```python
import torch

def _softmax(x, axis=-1):
    return torch.softmax(x, dim=axis)
def _gelu(x):
    return torch.nn.functional.gelu(x, approximate="tanh")
def _silu(x):
    return torch.nn.functional.silu(x)
def _sigmoid(x):
    return torch.sigmoid(x)
def _layernorm(x, axis=-1, eps=1e-5):
    m = x.mean(dim=axis, keepdim=True)
    v = x.var(dim=axis, keepdim=True, unbiased=False)
    return (x - m) / torch.sqrt(v + eps)
def _scatter_add(tgt, idx, src, axis=0):
    return tgt.clone().index_add_(axis, idx, src)
def _segment_sum(src, seg, n):
    out = torch.zeros((n,) + src.shape[1:], dtype=src.dtype)
    return out.index_add_(0, seg, src)
def _pad(x, pw):
    flat = tuple(v for pair in reversed(pw) for v in pair)
    return torch.nn.functional.pad(x, flat)

kernel_name = 'parallel_sum__mha_block_cached__dense_activation_squared_relu__decode'

def setup_inputs():

    _w = (lambda a: (lambda t: t.to(torch.bfloat16) if t.is_floating_point() else t)(torch.as_tensor(a)))
    def _A_setup():
        B, Sq, D = 1, 1, 512
        H, Sk, Dh = 32, 65536, 128
        return {
            "x": _w((lambda *s: torch.randn(*s, dtype=torch.bfloat16) * 0.05)(B, Sq, D)),
            "k_cache": _w((lambda *s: torch.randn(*s, dtype=torch.bfloat16) * 3.2)(B, H, Sk, Dh)),
            "v_cache": _w((lambda *s: torch.randn(*s, dtype=torch.bfloat16) * 1.6)(B, H, Sk, Dh)),
            "wq": _w((lambda *s: torch.randn(*s, dtype=torch.bfloat16) * 3.2)(D, H * Dh) * (D ** -0.5)),
            "wo": _w((lambda *s: torch.randn(*s, dtype=torch.bfloat16) * 1.6)(H * Dh, D) * ((H * Dh) ** -0.5)),
        }
    _A_in = _A_setup()

    def _B_setup():
        B, S, D, F = 1, 1, 512, 1792
        return {
            "x": _w((lambda *s: torch.randn(*s, dtype=torch.bfloat16) * 0.05)(B, S, D)),
            "w1": _w((lambda *s: torch.randn(*s, dtype=torch.bfloat16) * 0.05)(D, F)),
            "b1": _w((lambda *s: torch.randn(*s, dtype=torch.bfloat16) * 0.05)(F)),
            "w2": _w((lambda *s: torch.randn(*s, dtype=torch.bfloat16) * 0.05)(F, D)),
            "b2": _w((lambda *s: torch.randn(*s, dtype=torch.bfloat16) * 0.05)(D)),
        }
    _B_in = _B_setup()

    return {
        "A_x": _A_in["x"],
        "A_k_cache": _A_in["k_cache"],
        "A_v_cache": _A_in["v_cache"],
        "A_wq": _A_in["wq"],
        "A_wo": _A_in["wo"],
        "B_x": _B_in["x"],
        "B_w1": _B_in["w1"],
        "B_b1": _B_in["b1"],
        "B_w2": _B_in["w2"],
        "B_b2": _B_in["b2"],
    }

def reference(A_x, A_k_cache, A_v_cache, A_wq, A_wo, B_x, B_w1, B_b1, B_w2, B_b2):
    def _A_ref(x, k_cache, v_cache, wq, wo):
        B, Sq, D = x.shape
        H, Dh = 32, 128
        q = (lambda x, *d: x.permute(*d))((x @ wq).reshape(B, Sq, H, Dh), 0, 2, 1, 3)
        scores = torch.einsum("bhqd,bhkd->bhqk", q, k_cache) * (Dh ** -0.5)
        p = _softmax(scores, axis=-1)
        o = torch.einsum("bhqk,bhkd->bhqd", p, v_cache)
        return (lambda x, *d: x.permute(*d))(o, 0, 2, 1, 3).reshape(B, Sq, H * Dh) @ wo

    def _B_ref(x, w1, b1, w2, b2):
        h = torch.einsum("bsd,df->bsf", x, w1) + b1
        zero = torch.zeros_like(h)
        r = torch.where(h > zero, h, zero)
        h = r * r
        out = torch.einsum("bsf,fd->bsd", h, w2) + b2
        return out

    x = A_x
    xn = _layernorm(x, axis=-1)
    return x + _A_ref(xn, A_k_cache, A_v_cache, A_wq, A_wo) + _B_ref(xn, B_w1, B_b1, B_w2, B_b2)
```

```python
import sys, struct
KN = "parallel_sum__mha_block_cached__dense_activation_squared_relu__decode"

def f32(x):
    return "0x%08x" % struct.unpack("<I", struct.pack("<f", x))[0]

HEADER = """; Kernarg layout for this problem (104 bytes, ptrs only, base s[0:1]):
;   offset  96: d_ws      2147483648 bytes workspace
"""

L_QP   = 0
L_OP   = 2048
L_ST   = 4096
L_FW   = 4160
L_TR   = 4176
L_FIN  = 4224
L_FS   = 4608
L_SC   = 8192
LDS_BYTES = L_SC + 4 * 8192

W_ST   = 0
W_PART = 0x10000
PART_STRIDE = 272 * 64
WS_BYTES = W_PART + 32 * PART_STRIDE
NFFN = 14
FFN_WG0 = 32
SPIN_MAX = 200000

LOG2E = 1.4426950408889634
SCALE = 128 ** -0.5

def c_of_tile(i):
    for c in range(16):
        t = (c >> 3) | (((c >> 2) & 1) << 1) | ((c & 1) << 2) | (((c >> 1) & 1) << 3)
        if t == i:
            return c

class Gen:
    def __init__(self, D=6, mode="slow", stamps=False, wgmap="A", dbg=""):
        self.dbg = dbg.split(",")
        self.wpol = " nt" if "wnt" in self.dbg else ""
        self.NPRE = 48
        self.TRIG = 8
        self.pace = 0
        for o in self.dbg:
            if o.startswith("pre"): self.NPRE = int(o[3:])
            if o.startswith("trig"): self.TRIG = int(o[4:])
            if o.startswith("pace"): self.pace = int(o[4:])
        self.wgmap = wgmap
        self.L = []
        self.D = D
        self.mode = mode
        self.stamps = stamps
        self.nlab = 0
    def A(self, s):
        self.L.append("  " + s)
    def lab(self, name):
        self.L.append(name + ":")
    def newlab(self, p="L"):
        self.nlab += 1
        return f"{p}_{self.nlab}"
    def nop(self, n):
        while n > 0:
            k = min(n, 16)
            self.A(f"s_nop {k-1}")
            n -= k
    def rnd_bf16(self, d, s):
        self.A(f"v_cvt_pk_bf16_f32 v{d}, v{s}, v{s}")
        self.A(f"v_and_b32 v{d}, 0xffff0000, v{d}")
    def bfly(self, op, v, t, full=True):
        for ctl in ("quad_perm:[1,0,3,2]", "quad_perm:[2,3,0,1]", "row_half_mirror", "row_mirror"):
            self.nop(2)
            self.A(f"{op}_dpp v{v}, v{v}, v{v} {ctl} row_mask:0xf bank_mask:0xf")
        sw = ["v_permlane16_swap_b32"] + (["v_permlane32_swap_b32"] if full else [])
        for s in sw:
            self.A(f"v_mov_b32 v{t}, v{v}")
            self.nop(2)
            self.A(f"{s} v{v}, v{t}")
            self.nop(1)
            self.A(f"{op} v{v}, v{v}, v{t}")
    def srd(self, d, base, nbytes):
        self.A(f"s_mov_b32 s{d}, s{base}")
        self.A(f"s_and_b32 s{d+1}, s{base+1}, 0xffff")
        self.A(f"s_mov_b32 s{d+2}, {nbytes}")
        self.A(f"s_mov_b32 s{d+3}, 0x20000")
    def poll_counter(self, voff, off, target, vt, st, sc):
        l0 = self.newlab("L_poll"); l1 = self.newlab("L_polld")
        self.A(f"s_mov_b32 s{sc}, 0")
        self.lab(l0)
        self.A(f"buffer_load_dword v{vt}, v{voff}, s[60:63], 0 offen offset:{off} sc1")
        self.A("s_waitcnt vmcnt(0)")
        self.A(f"v_readfirstlane_b32 s{st}, v{vt}")
        self.A(f"s_add_u32 s{sc}, s{sc}, 1")
        self.A(f"s_cmp_ge_u32 s{st}, {target}")
        self.A(f"s_cbranch_scc1 {l1}")
        self.A(f"s_cmp_ge_u32 s{sc}, {SPIN_MAX}")
        self.A(f"s_cbranch_scc1 {l1}")
        self.A("s_sleep 64")
        self.A(f"s_branch {l0}")
        self.lab(l1)
    def wait_trigger(self, vz, vt, sc):
        l0 = self.newlab("L_tr"); l1 = self.newlab("L_trd")
        self.A(f"s_mov_b32 s{sc}, 0")
        self.lab(l0)
        self.A(f"ds_read_b32 v{vt}, v{vz} offset:{L_TR}")
        self.A("s_waitcnt lgkmcnt(0)")
        self.A(f"v_cmp_ne_u32 vcc, 1, v{vt}")
        self.A(f"s_add_u32 s{sc}, s{sc}, 1")
        self.A(f"s_cmp_ge_u32 s{sc}, {SPIN_MAX*20}"); self.A(f"s_cbranch_scc1 {l1}")
        self.A(f"s_cbranch_vccz {l1}")
        self.A("s_sleep 32")
        self.A(f"s_branch {l0}")
        self.lab(l1)
    def stamp(self, idx):
        if self.stamps:
            self.A(f"s_memrealtime s[{70+2*idx}:{71+2*idx}]")
    def stamp_out(self, n):
        if not self.stamps: return
        self.A("s_waitcnt lgkmcnt(0)")
        self.A("s_mov_b64 exec, -1")
        self.A("s_lshl_b32 s4, s2, 3"); self.A("s_add_u32 s4, s4, s3"); self.A("s_lshl_b32 s4, s4, 7"); self.A("s_add_u32 s4, s4, 0x100000")
        self.A("v_mov_b32 v1, s4")
        self.A("s_getreg_b32 s5, hwreg(HW_REG_XCC_ID)")
        for i in range(n):
            self.A(f"v_mov_b32 v2, s{70+2*i}"); self.A(f"v_mov_b32 v3, s{71+2*i}")
            self.A(f"global_store_dwordx2 v1, v[2:3], s[40:41] offset:{8*i}")
            self.nop(2)
        self.A("v_mov_b32 v2, s5")
        self.A(f"global_store_dword v1, v2, s[40:41] offset:120")

    def build(self):
        A = self.A; D = self.D
        self.L.append(HEADER.rstrip("\n"))
        self.L.append(f"; @launch grid=(256,1,1) block=(512,1,1) lds={LDS_BYTES}")
        self.L.append('.amdgcn_target "amdgcn-amd-amdhsa--gfx950"')
        self.L.append(".text"); self.L.append(f".globl {KN}_kernel"); self.L.append(".p2align 8")
        self.L.append(f".type {KN}_kernel,@function"); self.L.append(f"{KN}_kernel:")
        A("s_cmp_ge_u32 s2, 256"); A("s_cbranch_scc1 L_end")
        A("s_load_dwordx16 s[16:31], s[0:1], 0")
        A("s_load_dwordx8 s[32:39], s[0:1], 64")
        A("s_load_dwordx2 s[40:41], s[0:1], 96")
        self.stamp(0)
        A("v_lshrrev_b32 v1, 6, v0")
        A("v_and_b32 v0, 63, v0")
        A("v_readfirstlane_b32 s3, v1")
        A("v_and_b32 v1, 15, v0")
        A("v_lshrrev_b32 v2, 4, v0")
        if self.wgmap == "B":
            A("s_and_b32 s4, s2, 7"); A("s_lshl_b32 s4, s4, 2")
            A("s_lshr_b32 s5, s2, 3"); A("s_and_b32 s6, s5, 3"); A("s_add_u32 s4, s4, s6")
            A("s_lshr_b32 s5, s2, 5")
        else:
            A("s_lshr_b32 s4, s2, 3")
            A("s_and_b32 s5, s2, 7")
        A("v_lshrrev_b32 v3, 1, v1")
        A("v_and_b32 v8, 1, v1")
        A("v_mov_b32 v9, 0xffff")
        A("v_lshlrev_b32 v8, 4, v8")
        A("v_lshlrev_b32 v9, v8, v9")
        for k in range(4):
            A(f"v_cmp_eq_u32 vcc, {k}, v3")
            self.nop(2)
            A(f"v_cndmask_b32 v{4+k}, 0, v9, vcc")
        A("s_cmp_ge_u32 s3, 4")
        A("s_cbranch_scc1 L_helper")
        self.stream_wave()
        self.lab("L_helper")
        self.helper_wave()
        self.lab("L_end"); A("s_endpgm")
        self.L.append('.section .rodata,"a"'); self.L.append(".p2align 6"); self.L.append(f".amdhsa_kernel {KN}_kernel")
        A(".amdhsa_next_free_vgpr 256"); A(".amdhsa_next_free_sgpr 96"); A(".amdhsa_accum_offset 256")
        A(".amdhsa_group_segment_fixed_size 0"); A(".amdhsa_kernarg_size 104"); A(".amdhsa_user_sgpr_count 2")
        A(".amdhsa_user_sgpr_kernarg_segment_ptr 1"); A(".amdhsa_system_sgpr_workgroup_id_x 1")
        self.L.append(".end_amdhsa_kernel")
        return "\n".join(self.L) + "\n"

    def stream_wave(self):
        A = self.A; D = self.D
        VOFF = 10; Q = 12
        RB = 64
        P = 32
        T0, T1 = 16, 17
        M, LS = 18, 19
        SCA = 20
        PK = 21; SN = 22
        AA = (24, 28)
        ACC = 48
        TQ = 52
        if "noprio" not in self.dbg: A("s_setprio 2")
        A("s_waitcnt lgkmcnt(0)")
        A("s_lshl_b32 s6, s4, 24"); A("s_lshl_b32 s7, s5, 21"); A("s_add_u32 s6, s6, s7")
        for sd, sb in ((44, 18), (48, 20)):
            A(f"s_add_u32 s{sd}, s{sb}, s6"); A(f"s_addc_u32 s{sd+1}, s{sb+1}, 0"); A(f"s_and_b32 s{sd+1}, s{sd+1}, 0xffff")
            A(f"s_mov_b32 s{sd+2}, 0x200000"); A(f"s_mov_b32 s{sd+3}, 0x20000")
        A("s_lshl_b32 s7, s3, 10")
        A(f"v_lshlrev_b32 v{VOFF}, 4, v0"); A(f"v_add_u32 v{VOFF}, s7, v{VOFF}")
        A("s_mov_b32 s8, 0")
        NPRE = self.NPRE
        def slot_reg(k):
            if k < 16 or k >= NPRE: return RB + 4 * (k % 16)
            return 128 + 4 * (k - 16)
        def load(k, srd, reg=None):
            b = RB + 4 * (k % 16) if reg is None else reg
            A(f"buffer_load_dwordx4 v[{b}:{b+3}], v{VOFF}, s[{srd}:{srd+3}], s8 offen nt")
            A("s_add_u32 s8, s8, 4096")
        DW = D - 1 if self.mode == "slow" else D
        for i in range(min(NPRE, DW)): load(i, 44, slot_reg(i))
        A("s_mov_b32 s10, 0xaaaaaaaa"); A("s_mov_b32 s11, 0xaaaaaaaa")
        A("s_mov_b32 s12, 0xcccccccc"); A("s_mov_b32 s13, 0xcccccccc")
        A(f"s_mov_b32 s14, {f32(SCALE)}"); A(f"s_mov_b32 s15, {f32(LOG2E)}")
        A(f"v_mov_b32 v{M}, 0xff7fffff"); A(f"v_mov_b32 v{LS}, 0")
        A(f"s_lshl_b32 s7, s3, 13"); A(f"s_add_u32 s7, s7, {L_SC}")
        A(f"v_lshlrev_b32 v{SCA}, 2, v0"); A(f"v_add_u32 v{SCA}, s7, v{SCA}")
        for r in range(4): A(f"v_mov_b32 v{ACC+r}, 0")
        A(f"v_lshlrev_b32 v{T0}, 5, v1")
        if self.mode == "fast": A("s_mov_b64 vcc, -1")
        else: A("s_mov_b64 vcc, 0")
        for i in range(DW, NPRE):
            A(f"s_waitcnt vmcnt({DW-1})")
            load(i, 44, slot_reg(i))
        self.stamp(4)
        A("s_barrier")
        self.stamp(1)
        tq = list(range(P, P + 16)) + list(range(TQ, TQ + 12)) + list(range(AA[0], AA[0] + 4))
        for h in range(4):
            for hf in range(2):
                r = tq[8 * h + 4 * hf]
                A(f"ds_read_b128 v[{r}:{r+3}], v{T0} offset:{L_QP+512*h+16*hf}")
        A("s_waitcnt lgkmcnt(0)")
        for e in range(8):
            A(f"v_add_f32 v{tq[e]}, v{tq[e]}, v{tq[8+e]}")
            A(f"v_add_f32 v{tq[16+e]}, v{tq[16+e]}, v{tq[24+e]}")
        for e in range(8):
            A(f"v_add_f32 v{tq[e]}, v{tq[e]}, v{tq[16+e]}")
        for k in range(4):
            A(f"v_cvt_pk_bf16_f32 v{Q+k}, v{tq[2*k]}, v{tq[2*k+1]}")
        def wait_tile(n):
            A(f"s_waitcnt vmcnt({n})")
        def mode_wait():
            l = self.newlab("L_m")
            A(f"s_cbranch_vccnz {l}")
            A(f"s_waitcnt vmcnt({D-2})")
            self.lab(l)
        def dots(i, reg=None):
            b = RB + 4 * i if reg is None else reg
            if "nok" in self.dbg: return
            A(f"v_dot2_f32_bf16 v{P+i}, v{b}, v{Q}, 0")
            for k in range(1, 4):
                A(f"v_dot2_f32_bf16 v{P+i}, v{b+k}, v{Q+k}, v{P+i}")
        def l1(a, b):
            A(f"v_add_f32_dpp v{P+a}, v{P+a}, v{P+a} row_ror:8 row_mask:0xf bank_mask:0x3")
            A(f"v_add_f32_dpp v{P+a}, v{P+b}, v{P+b} row_ror:8 row_mask:0xf bank_mask:0xc")
        def l2(a, b):
            A(f"v_add_f32_dpp v{P+a}, v{P+a}, v{P+a} row_half_mirror row_mask:0xf bank_mask:0x5")
            A(f"v_add_f32_dpp v{P+a}, v{P+b}, v{P+b} row_half_mirror row_mask:0xf bank_mask:0xa")
        def l34(a, b, sm, qp):
            A(f"v_cndmask_b32 v{T0}, v{P+b}, v{P+a}, s[{sm}:{sm+1}]")
            A(f"v_cndmask_b32 v{T1}, v{P+a}, v{P+b}, s[{sm}:{sm+1}]")
            self.nop(2)
            A(f"v_add_f32_dpp v{P+a}, v{T0}, v{T1} quad_perm:{qp} row_mask:0xf bank_mask:0xf")
        def combos_after(i):
            if "nok" in self.dbg: return
            if i >= 2 and i % 2 == 0: l1(i - 2, i - 1)
            if i >= 5 and i % 4 == 1: l2(i - 5, i - 3)
            if i == 11: l34(0, 4, 10, "[1,0,3,2]")
        def finish_iter():
            self.nop(3)
            l1(14, 15)
            self.nop(2)
            l2(12, 14)
            self.nop(1)
            l34(8, 12, 10, "[1,0,3,2]")
            self.nop(1)
            l34(0, 8, 12, "[2,3,0,1]")
            S = P
            self.rnd_bf16(S, S)
            A(f"v_mul_f32 v{S}, s14, v{S}")
            self.rnd_bf16(S, S)
            A(f"ds_write_b32 v{SCA}, v{S}")
            A(f"v_add_u32 v{SCA}, 256, v{SCA}")
            A(f"v_max_f32 v{T0}, v{M}, v{S}")
            A(f"v_sub_f32 v{T1}, v{M}, v{T0}")
            A(f"v_sub_f32 v{S}, v{S}, v{T0}")
            A(f"v_mul_f32 v{T1}, s15, v{T1}")
            A(f"v_mul_f32 v{S}, s15, v{S}")
            A(f"v_exp_f32 v{T1}, v{T1}")
            A(f"v_exp_f32 v{S}, v{S}")
            A(f"v_mov_b32 v{M}, v{T0}")
            A(f"v_fma_f32 v{LS}, v{LS}, v{T1}, v{S}")
        NCU = NPRE + 16
        issued = NPRE
        last_issue = NCU + D
        ratio = NPRE // 16
        for t in range(NCU):
            need = issued - 1 - t
            wait_tile(min(need, 63))
            dots(t % 16, slot_reg(t))
            combos_after(t % 16)
            if t % 16 == 15: finish_iter()
            want = False
            if t < NPRE:
                want = (t % ratio == ratio - 1)
            else:
                k = issued - NCU
                want = (t - NPRE + 1) * D >= (k + 1) * 16
            while want and issued < last_issue:
                assert issued - 16 <= t if issued >= NCU else (issued % 16) <= t
                A(f"s_waitcnt vmcnt({DW-1})")
                load(issued, 44); issued += 1
                want = False
        assert issued == last_issue, (issued, last_issue)
        A(f"s_mov_b32 s9, {31 - NCU // 16}")
        self.lab("L_kloop")
        for i in range(16):
            wait_tile(D - 1); mode_wait(); load(i + D, 44); dots(i); combos_after(i)
        finish_iter()
        A("s_sub_u32 s9, s9, 1"); A("s_cmp_lg_u32 s9, 0"); A("s_cbranch_scc1 L_kloop")
        for i in range(16):
            wait_tile(D - 1); mode_wait()
            if i + D == 16: A("s_mov_b32 s8, 0")
            load(i + D, 44 if i + D < 16 else 48); dots(i); combos_after(i)
        finish_iter()
        self.stamp(2)
        A(f"v_subrev_u32 v{SCA}, 8192, v{SCA}")
        A(f"ds_read_b32 v{SN}, v{SCA}")
        A(f"v_mov_b32 v{P}, v{M}")
        self.bfly("v_max_f32", P, T0)
        A(f"v_sub_f32 v{T1}, v{M}, v{P}")
        A(f"v_mul_f32 v{T1}, s15, v{T1}")
        A(f"v_exp_f32 v{T1}, v{T1}")
        A(f"v_mov_b32 v{M}, v{P}")
        A(f"v_mul_f32 v{P+1}, v{LS}, v{T1}")
        self.bfly("v_add_f32", P + 1, T0)
        A(f"v_mov_b32 v{P+2}, 1"); A(f"v_mov_b32 v{P+3}, 0")
        A(f"s_lshl_b32 s7, s3, 4"); A(f"s_add_u32 s7, s7, {L_ST}"); A(f"v_mov_b32 v{T0}, s7")
        A("s_mov_b64 exec, 1")
        A(f"ds_write_b128 v{T0}, v[{P}:{P+3}]")
        A("s_mov_b64 exec, -1")
        def v_iter(last):
            A("s_waitcnt lgkmcnt(0)")
            A(f"v_sub_f32 v{PK}, v{SN}, v{M}")
            A(f"v_mul_f32 v{PK}, s15, v{PK}")
            A(f"v_exp_f32 v{PK}, v{PK}")
            if not last:
                A(f"v_add_u32 v{SCA}, 256, v{SCA}")
                A(f"ds_read_b32 v{SN}, v{SCA}")
            else:
                self.nop(1)
            A(f"v_cvt_pk_bf16_f32 v{PK}, v{PK}, v{PK}")
            self.nop(2)
            for i in range(16):
                a = AA[i % 2]
                for k in range(4 if "nov" not in self.dbg else 0):
                    A(f"v_and_b32_dpp v{a+k}, v{PK}, v{4+k} row_newbcast:{c_of_tile(i)} row_mask:0xf bank_mask:0xf")
                if last and i + D >= 16:
                    wait_tile(15 - i); self.nop(1)
                else:
                    wait_tile(D - 1); mode_wait(); load(i + D, 48)
                b = RB + 4 * i
                if "nov" not in self.dbg and "nomfma" not in self.dbg:
                    A(f"v_mfma_f32_16x16x32_bf16 v[{ACC}:{ACC+3}], v[{a}:{a+3}], v[{b}:{b+3}], v[{ACC}:{ACC+3}]")
        A("s_mov_b32 s9, 31")
        self.lab("L_vloop")
        v_iter(False)
        A(f"s_cmp_lg_u32 s9, {self.TRIG}"); A("s_cbranch_scc1 L_notrig")
        A(f"v_mov_b32 v{T0}, {L_TR}"); A(f"v_mov_b32 v{T1}, 1")
        A(f"ds_write_b32 v{T0}, v{T1}")
        self.lab("L_notrig")
        A("s_sub_u32 s9, s9, 1"); A("s_cmp_lg_u32 s9, 0"); A("s_cbranch_scc1 L_vloop")
        A(f"s_lshl_b32 s7, s3, 9"); A(f"s_add_u32 s7, s7, {L_OP}")
        A(f"v_lshlrev_b32 v{T0}, 5, v1"); A(f"v_lshlrev_b32 v{T1}, 4, v2"); A(f"v_add3_u32 v{T0}, v{T0}, v{T1}, s7")
        v_iter(True)
        A("s_mov_b32 exec_hi, 0")
        self.nop(8)
        A(f"ds_write_b128 v{T0}, v[{ACC}:{ACC+3}]")
        A("s_waitcnt lgkmcnt(0)")
        A("s_barrier")
        self.stamp(3)
        self.stamp_out(5)
        A("s_endpgm")

    def diag_mfmas(self, n, pk_of, wb, acc, waitbase, first_zero=True, hilo=False, sel=None, tb=None):
        A = self.A
        AA = (24, 28)
        def build(j):
            a = AA[j % 2]
            if not hilo:
                for k in range(4):
                    A(f"v_and_b32_dpp v{a+k}, v{pk_of(j)}, v{4+k} row_newbcast:{j%16} row_mask:0xf bank_mask:0xf")
            else:
                A(f"v_mov_b32_dpp v{tb}, v{pk_of(j)} row_newbcast:{j%16} row_mask:0xf bank_mask:0xf")
                for k in range(4):
                    A(f"v_perm_b32 v{a+k}, v{tb}, v{tb}, v{sel+k}")
        build(0)
        for j in range(n):
            if j + 1 < n: build(j + 1)
            else: self.nop(2)
            if waitbase is not None: A(f"s_waitcnt vmcnt({waitbase - j})")
            a = AA[j % 2]; b = wb + 4 * j
            c = "0" if (j == 0 and first_zero) else f"v[{acc}:{acc+3}]"
            A(f"v_mfma_f32_16x16x32_bf16 v[{acc}:{acc+3}], v[{a}:{a+3}], v[{b}:{b+3}], {c}")

    def helper_wave(self):
        A = self.A
        WB = 128
        XV = 32
        XD = 44
        T0, T1, T2 = 16, 17, 18
        MEAN, RS = 19, 20
        VZ = 21
        VO = 22
        ACC = 52
        SEL = 56
        ACC2 = 60
        A("s_sub_u32 s9, s3, 4")
        A("s_waitcnt lgkmcnt(0)")
        self.srd(44, 16, 1024)
        self.srd(48, 22, 512 * 8192)
        self.srd(60, 38, 256)
        self.srd(64, 40, WS_BYTES)
        A(f"v_lshlrev_b32 v{T0}, 4, v0")
        A(f"buffer_load_dwordx4 v[{XV}:{XV+3}], v{T0}, s[44:47], 0 offen")
        A(f"v_lshlrev_b32 v{T1}, 2, v1"); A(f"v_add_u32 v{T1}, v{T1}, v2"); A(f"v_lshlrev_b32 v{T1}, 1, v{T1}")
        A("s_lshl_b32 s7, s9, 8")
        A(f"buffer_load_ushort v{XD}, v{T1}, s[44:47], s7 offen")
        A(f"buffer_load_ushort v{XD+1}, v{T1}, s[44:47], s7 offen offset:128")
        A("s_lshl_b32 s7, s4, 8"); A("s_lshl_b32 s8, s9, 20"); A("s_add_u32 s7, s7, s8")
        A(f"v_lshlrev_b32 v{VO}, 13, v2"); A(f"v_lshlrev_b32 v{T2}, 4, v1"); A(f"v_add3_u32 v{VO}, v{VO}, v{T2}, s7")
        A("s_mov_b32 s8, 0")
        for j in range(32):
            A(f"buffer_load_dwordx4 v[{WB+4*j}:{WB+4*j+3}], v{VO}, s[48:51], s8 offen{self.wpol}")
            if j < 31: A("s_add_u32 s8, s8, 32768")
        A(f"v_mov_b32 v{VZ}, 0")
        A(f"v_lshlrev_b32 v{T2}, 2, v0")
        A("s_mov_b32 exec_hi, 0")
        A(f"ds_write_b32 v{T2}, v{VZ} offset:{L_ST}")
        A("s_mov_b64 exec, -1")
        A("s_waitcnt vmcnt(34)")
        U = XV + 4
        for k in range(4):
            A(f"v_lshlrev_b32 v{U+2*k}, 16, v{XV+k}")
            A(f"v_and_b32 v{U+2*k+1}, 0xffff0000, v{XV+k}")
        A(f"v_add_f32 v{MEAN}, v{U}, v{U+1}")
        for e in range(2, 8): A(f"v_add_f32 v{MEAN}, v{MEAN}, v{U+e}")
        self.bfly("v_add_f32", MEAN, T0)
        A(f"v_mul_f32 v{MEAN}, {f32(1.0/512)}, v{MEAN}")
        for e in range(8): A(f"v_sub_f32 v{U+e}, v{U+e}, v{MEAN}")
        A(f"v_mul_f32 v{RS}, v{U}, v{U}")
        for e in range(1, 8): A(f"v_fmac_f32 v{RS}, v{U+e}, v{U+e}")
        self.bfly("v_add_f32", RS, T0)
        A(f"v_mul_f32 v{RS}, {f32(1.0/512)}, v{RS}")
        self.rnd_bf16(MEAN, MEAN)
        self.rnd_bf16(RS, RS)
        A(f"v_add_f32 v{RS}, {f32(1e-5)}, v{RS}")
        self.rnd_bf16(RS, RS)
        A(f"v_sqrt_f32 v{RS}, v{RS}")
        self.nop(1)
        self.rnd_bf16(RS, RS)
        A(f"v_rcp_f32 v{RS}, v{RS}")
        def xn_pack(r):
            A(f"v_lshlrev_b32 v{r}, 16, v{r}")
            A(f"v_sub_f32 v{r}, v{r}, v{MEAN}")
            self.rnd_bf16(r, r)
            A(f"v_mul_f32 v{r}, v{r}, v{RS}")
            A(f"v_cvt_pk_bf16_f32 v{r}, v{r}, v{r}")
        A("s_waitcnt vmcnt(32)")
        xn_pack(XD); xn_pack(XD + 1)
        self.nop(2)
        self.diag_mfmas(32, lambda j: XD + j // 16, WB, ACC, 31)
        A(f"s_lshl_b32 s7, s9, 9")
        A(f"v_lshlrev_b32 v{T0}, 5, v1"); A(f"v_lshlrev_b32 v{T1}, 4, v2"); A(f"v_add3_u32 v{T0}, v{T0}, v{T1}, s7")
        A("s_mov_b32 exec_hi, 0")
        self.nop(6)
        A(f"ds_write_b128 v{T0}, v[{ACC}:{ACC+3}] offset:{L_QP}")
        A("s_mov_b32 exec_hi, -1")
        A("s_waitcnt lgkmcnt(0)")
        A("s_barrier")
        self.stamp(1)
        lskip = self.newlab("L_noinit")
        A("s_cmp_ge_u32 s2, 32"); A(f"s_cbranch_scc1 {lskip}")
        A(f"s_mul_i32 s7, s2, {PART_STRIDE}"); A(f"s_add_u32 s7, s7, {W_PART}")
        A("s_lshl_b32 s8, s9, 12"); A("s_add_u32 s7, s7, s8")
        A(f"v_lshlrev_b32 v{T0}, 4, v0")
        for r in range(4): A(f"v_mov_b32 v{ACC2+r}, -1")
        for k in range(4):
            A(f"buffer_store_dwordx4 v[{ACC2}:{ACC2+3}], v{T0}, s[64:67], s7 offen offset:{1024*k} sc1")
        l2 = self.newlab("L_noinit2")
        A("s_cmp_lg_u32 s9, 3"); A(f"s_cbranch_scc1 {l2}")
        A("s_add_u32 s7, s7, 4096")
        A(f"buffer_store_dwordx4 v[{ACC2}:{ACC2+3}], v{T0}, s[64:67], s7 offen sc1")
        self.lab(l2)
        A("s_waitcnt vmcnt(0)")
        A(f"v_mov_b32 v{T1}, 1")
        A("s_mov_b64 exec, 1")
        A(f"buffer_atomic_add v{T1}, v{VZ}, s[60:63], 0 offen sc1")
        A("s_mov_b64 exec, -1")
        self.lab(lskip)
        VST = 23
        A(f"v_lshrrev_b32 v{T0}, 1, v1"); A(f"v_mul_u32_u24 v{VST}, {PART_STRIDE}, v{T0}")
        A(f"v_and_b32 v{T0}, 1, v1"); A(f"v_lshlrev_b32 v{T0}, 5, v{T0}")
        A(f"v_and_b32 v{T1}, 1, v2"); A(f"v_lshlrev_b32 v{T1}, 4, v{T1}")
        A(f"v_add3_u32 v{VST}, v{VST}, v{T0}, v{T1}")
        lnf = self.newlab("L_noffn")
        A("s_cmp_lg_u32 s9, 3"); A(f"s_cbranch_scc1 {lnf}")
        A(f"s_sub_u32 s10, s2, {FFN_WG0}"); A(f"s_cmp_ge_u32 s10, {NFFN}"); A(f"s_cbranch_scc1 {lnf}")
        if "noffn" not in self.dbg: self.ffn(WB, XD, MEAN, RS, VZ, VO, ACC, ACC2, VST, xn_pack)
        self.lab(lnf)
        self.srd(48, 24, 4096 * 1024)
        A("s_lshl_b32 s7, s4, 17"); A("s_lshl_b32 s8, s9, 8"); A("s_add_u32 s7, s7, s8")
        A(f"v_lshlrev_b32 v{VO}, 10, v2"); A(f"v_lshlrev_b32 v{T2}, 4, v1"); A(f"v_add3_u32 v{VO}, v{VO}, v{T2}, s7")
        A("s_mov_b32 s8, 0")
        for j in range(32):
            A(f"buffer_load_dwordx4 v[{WB+4*j}:{WB+4*j+3}], v{VO}, s[48:51], s8 offen{self.wpol}")
            if j < 31: A("s_add_u32 s8, s8, 4096")
            if self.pace: A(f"s_waitcnt vmcnt({self.pace-1})")
        A(f"v_mov_b32 v{T0}, 0x0100"); A(f"v_mov_b32 v{T1}, 0x0302")
        A("v_cmp_gt_u32 vcc, 8, v1"); self.nop(2)
        A(f"v_cndmask_b32 v{T0}, v{T1}, v{T0}, vcc")
        A(f"v_lshlrev_b32 v{T1}, 16, v{T0}"); A(f"v_or_b32 v{T0}, v{T0}, v{T1}")
        A(f"v_and_b32 v{T1}, 7, v1"); A(f"v_lshrrev_b32 v{T2}, 1, v{T1}")
        A(f"v_and_b32 v{T1}, 1, v1"); A(f"v_lshlrev_b32 v{T1}, 4, v{T1}")
        A(f"v_mov_b32 v{ACC2}, 0xffff"); A(f"v_lshlrev_b32 v{T1}, v{T1}, v{ACC2}")
        A(f"v_mov_b32 v{ACC2}, 0x0c0c0c0c")
        A(f"v_bfi_b32 v{T0}, v{T1}, v{T0}, v{ACC2}")
        for k in range(4):
            A(f"v_cmp_eq_u32 vcc, {k}, v{T2}"); self.nop(2)
            A(f"v_cndmask_b32 v{SEL+k}, v{ACC2}, v{T0}, vcc")
        lns = self.newlab("L_nostat")
        A("s_cmp_lg_u32 s9, 0"); A(f"s_cbranch_scc1 {lns}")
        if "nostat" not in self.dbg: self.stats(VZ, ACC2)
        self.lab(lns)
        BF, XF = 34, 35
        lnb = self.newlab("L_nob")
        A("s_cmp_lg_u32 s9, 1"); A(f"s_cbranch_scc1 {lnb}")
        A("s_cmp_ge_u32 s2, 32"); A(f"s_cbranch_scc1 {lnb}")
        if "noffn" not in self.dbg: self.bpart(BF, XF, ACC2)
        self.lab(lnb)
        A(f"v_lshlrev_b32 v{T0}, 2, v1"); A(f"v_add_u32 v{T0}, v{T0}, v2"); A(f"v_lshlrev_b32 v{T0}, 2, v{T0}")
        A(f"s_mul_i32 s7, s9, {8*PART_STRIDE}"); A(f"s_add_u32 s7, s7, {W_PART}")
        A("s_lshl_b32 s8, s2, 6"); A("s_add_u32 s7, s7, s8")
        A("s_waitcnt vmcnt(0) lgkmcnt(0)")
        self.stamp(2)
        A("s_barrier")
        self.stamp(3)
        OP = 36
        FW = ACC2
        A(f"ds_read_b128 v[{FW}:{FW+3}], v{VZ} offset:{L_FW}")
        for w in range(4):
            A(f"ds_read_b32 v{OP+2*w}, v{T0} offset:{L_OP+512*w}")
            A(f"ds_read_b32 v{OP+2*w+1}, v{T0} offset:{L_OP+512*w+256}")
        A("s_waitcnt lgkmcnt(0)")
        for i in range(2):
            A(f"v_mul_f32 v{XD+i}, v{FW}, v{OP+i}")
            for w in range(1, 4): A(f"v_fmac_f32 v{XD+i}, v{FW+w}, v{OP+2*w+i}")
        for i in range(2):
            self.rnd_bf16(T1 + i, XD + i)
            A(f"v_sub_f32 v{T1+i}, v{XD+i}, v{T1+i}")
            A(f"v_cvt_pk_bf16_f32 v{XD+i}, v{XD+i}, v{T1+i}")
        self.nop(2)
        self.diag_mfmas(32, lambda j: XD + j // 16, WB, ACC, None, hilo=True, sel=SEL, tb=T0)
        self.nop(8)
        for r in range(4): A(f"v_mov_b32 v{ACC2+r}, v{ACC+r}")
        self.nop(1)
        for r in range(4): A(f"v_permlane32_swap_b32 v{ACC+r}, v{ACC2+r}")
        for r in range(4): A(f"v_add_f32 v{ACC+r}, v{ACC+r}, v{ACC2+r}")
        for r in range(4): A(f"v_min_u32 v{ACC+r}, -2, v{ACC+r}")
        A("s_mov_b32 exec_hi, 0")
        A(f"buffer_store_dwordx4 v[{ACC}:{ACC+3}], v{VST}, s[64:67], s7 offen sc1")
        A("s_mov_b32 exec_hi, -1")
        self.stamp(4)
        lfin = self.newlab("L_hend")
        A("s_cmp_ge_u32 s2, 32"); A(f"s_cbranch_scc1 {lfin}")
        A(f"s_mul_i32 s7, s2, {PART_STRIDE}"); A(f"s_add_u32 s7, s7, {W_PART}")
        A("s_lshl_b32 s8, s9, 12"); A("s_add_u32 s7, s7, s8")
        A(f"v_lshlrev_b32 v{T0}, 4, v0")
        G = 64
        lp = self.newlab("L_gat"); lpd = self.newlab("L_gatd")
        A("s_mov_b32 s10, 0")
        self.lab(lp)
        for k in range(4):
            A(f"buffer_load_dwordx4 v[{G+4*k}:{G+4*k+3}], v{T0}, s[64:67], s7 offen offset:{1024*k} sc1")
        A("s_waitcnt vmcnt(0)")
        A(f"v_max3_u32 v{T1}, v{G}, v{G+1}, v{G+2}")
        for k in range(3, 15, 2): A(f"v_max3_u32 v{T1}, v{T1}, v{G+k}, v{G+k+1}")
        A(f"v_max_u32 v{T1}, v{T1}, v{G+15}")
        A(f"v_cmp_eq_u32 vcc, -1, v{T1}")
        A("s_add_u32 s10, s10, 1")
        A(f"s_cmp_ge_u32 s10, {SPIN_MAX}"); A(f"s_cbranch_scc1 {lpd}")
        A(f"s_cbranch_vccnz {lp}")
        self.lab(lpd)
        self.stamp(5)
        for r in range(4):
            A(f"v_add_f32 v{G+r}, v{G+r}, v{G+4+r}")
            A(f"v_add_f32 v{G+8+r}, v{G+8+r}, v{G+12+r}")
        for r in range(4): A(f"v_add_f32 v{G+r}, v{G+r}, v{G+8+r}")
        self.quad_col_reduce(G, G + 4)
        A(f"s_lshl_b32 s7, s9, 6"); A(f"v_add_u32 v{T0}, s7, v{T0}")
        A("s_mov_b64 exec, 0xf")
        A(f"ds_write_b128 v{T0}, v[{G}:{G+3}] offset:{L_FIN}")
        A("s_mov_b64 exec, -1")
        A("s_waitcnt lgkmcnt(0)")
        A("s_barrier")
        A("s_cmp_lg_u32 s9, 1"); A(f"s_cbranch_scc1 {lfin}")
        A(f"v_lshlrev_b32 v{T0}, 2, v1")
        for h in range(4): A(f"ds_read_b32 v{G+h}, v{T0} offset:{L_FIN+64*h}")
        self.srd(44, 36, 1024)
        A("s_lshl_b32 s7, s2, 5")
        A(f"v_lshlrev_b32 v{T0}, 1, v1")
        A("s_waitcnt lgkmcnt(0)")
        A(f"v_add_f32 v{G}, v{G}, v{G+1}"); A(f"v_add_f32 v{G+2}, v{G+2}, v{G+3}"); A(f"v_add_f32 v{G}, v{G}, v{G+2}")
        self.rnd_bf16(G, G)
        A(f"v_add_f32 v{G}, v{XF}, v{G}")
        self.rnd_bf16(G, G)
        A(f"v_add_f32 v{G}, v{G}, v{BF}")
        A(f"v_cvt_pk_bf16_f32 v{G}, v{G}, v{G}")
        A("s_mov_b64 exec, 0xffff")
        A(f"buffer_store_short v{G}, v{T0}, s[44:47], s7 offen")
        self.stamp(6)
        self.lab(lfin)
        self.stamp_out(7)

    def quad_col_reduce(self, R, T):
        A = self.A
        for ctl in ("row_ror:4", "row_ror:8"):
            self.nop(2)
            for r in range(4):
                A(f"v_add_f32_dpp v{R+r}, v{R+r}, v{R+r} {ctl} row_mask:0xf bank_mask:0xf")
        for s in ("v_permlane16_swap_b32", "v_permlane32_swap_b32"):
            for r in range(4): A(f"v_mov_b32 v{T+r}, v{R+r}")
            self.nop(1)
            for r in range(4): A(f"{s} v{R+r}, v{T+r}")
            for r in range(4): A(f"v_add_f32 v{R+r}, v{R+r}, v{T+r}")

    def stats(self, VZ, S4):
        A = self.A
        T0, T1, T2 = 16, 17, 18
        A(f"v_and_b32 v{T0}, 3, v0"); A(f"v_lshlrev_b32 v{T0}, 4, v{T0}")
        l0 = self.newlab("L_st"); l1 = self.newlab("L_std")
        A("s_mov_b32 s10, 0")
        self.lab(l0)
        A(f"ds_read_b128 v[{S4}:{S4+3}], v{T0} offset:{L_ST}")
        A("s_waitcnt lgkmcnt(0)")
        A(f"v_cmp_ne_u32 vcc, 1, v{S4+2}")
        A("s_add_u32 s10, s10, 1")
        A(f"s_cmp_ge_u32 s10, {SPIN_MAX*20}"); A(f"s_cbranch_scc1 {l1}")
        A(f"s_cbranch_vccz {l1}")
        A("s_sleep 16")
        A(f"s_branch {l0}")
        self.lab(l1)
        A("s_lshl_b32 s7, s4, 8"); A("s_lshl_b32 s8, s5, 5"); A("s_add_u32 s8, s8, s7")
        A(f"v_lshlrev_b32 v{T0}, 3, v0")
        A("s_mov_b64 exec, 0xf")
        A(f"buffer_store_dwordx2 v[{S4}:{S4+1}], v{T0}, s[64:67], s8 offen offset:{W_ST} sc1")
        A("s_waitcnt vmcnt(0)")
        A("s_mov_b64 exec, 1")
        A(f"v_mov_b32 v{T1}, 1")
        A("s_lshl_b32 s8, s4, 2")
        A(f"v_mov_b32 v{T2}, s8")
        A(f"buffer_atomic_add v{T1}, v{T2}, s[60:63], 0 offen offset:128 sc1")
        A("s_mov_b64 exec, -1")
        A(f"v_mov_b32 v{T2}, s8")
        self.wait_trigger(VZ, T1, 10)
        self.poll_counter(T2, 128, 8, T1, 11, 10)
        A(f"v_and_b32 v{T0}, 31, v0"); A(f"v_lshlrev_b32 v{T0}, 3, v{T0}")
        A(f"buffer_load_dwordx2 v[{S4}:{S4+1}], v{T0}, s[64:67], s7 offen offset:{W_ST} sc1")
        A("s_waitcnt vmcnt(0)")
        A(f"v_mov_b32 v{S4+2}, v{S4}")
        self.bfly("v_max_f32", S4 + 2, T1, full=False)
        A(f"v_sub_f32 v{S4}, v{S4}, v{S4+2}")
        A(f"v_mul_f32 v{S4}, {f32(LOG2E)}, v{S4}")
        A(f"v_exp_f32 v{S4}, v{S4}")
        self.nop(1)
        A(f"v_mul_f32 v{S4+1}, v{S4+1}, v{S4}")
        self.bfly("v_add_f32", S4 + 1, T1, full=False)
        A(f"v_rcp_f32 v{S4+1}, v{S4+1}")
        self.nop(1)
        A(f"v_mul_f32 v{S4}, v{S4}, v{S4+1}")
        A(f"v_and_b32 v{T0}, 3, v0"); A(f"v_lshlrev_b32 v{T0}, 2, v{T0}")
        A("s_lshl_b32 s8, s5, 2")
        A("s_lshl_b64 s[12:13], 15, s8")
        A("s_mov_b64 exec, s[12:13]")
        A(f"ds_write_b32 v{T0}, v{S4} offset:{L_FW}")
        A("s_mov_b64 exec, -1")
        self.poll_counter(VZ, 0, 128, T1, 11, 10)

    def bpart(self, BF, XF, S4):
        A = self.A
        T0, T1, T2 = 16, 17, 18
        G = 64
        self.srd(52, 34, 1024)
        A("s_lshl_b32 s7, s2, 5")
        A(f"v_lshlrev_b32 v{T0}, 1, v1")
        A(f"buffer_load_ushort v{XF}, v{T0}, s[44:47], s7 offen")
        A(f"buffer_load_ushort v{S4}, v{T0}, s[52:55], s7 offen")
        A(f"v_mov_b32 v{T2}, 0")
        self.wait_trigger(T2, T1, 10)
        self.poll_counter(T2, 0, 128, T1, 11, 10)
        A(f"s_mul_i32 s7, s2, {PART_STRIDE}"); A(f"s_add_u32 s7, s7, {W_PART + 256*64}")
        A(f"v_lshlrev_b32 v{T0}, 4, v0")
        for r in range(4): A(f"v_mov_b32 v{G+r}, 0")
        A(f"s_mov_b32 exec_hi, {(1 << (NFFN*4 - 32)) - 1}")
        lp = self.newlab("L_bg"); lpd = self.newlab("L_bgd")
        A("s_mov_b32 s10, 0")
        self.lab(lp)
        A(f"buffer_load_dwordx4 v[{G}:{G+3}], v{T0}, s[64:67], s7 offen sc1")
        A("s_waitcnt vmcnt(0)")
        A(f"v_max3_u32 v{T1}, v{G}, v{G+1}, v{G+2}")
        A(f"v_max_u32 v{T1}, v{T1}, v{G+3}")
        A(f"v_cmp_eq_u32 vcc, -1, v{T1}")
        A("s_add_u32 s10, s10, 1")
        A(f"s_cmp_ge_u32 s10, {SPIN_MAX}"); A(f"s_cbranch_scc1 {lpd}")
        A(f"s_cbranch_vccz {lpd}")
        A("s_sleep 64")
        A(f"s_branch {lp}")
        self.lab(lpd)
        A("s_mov_b32 exec_hi, -1")
        self.quad_col_reduce(G, G + 4)
        A("s_mov_b64 exec, 0xf")
        A(f"ds_write_b128 v{T0}, v[{G}:{G+3}] offset:{L_FIN+256}")
        A("s_mov_b64 exec, -1")
        A(f"v_lshlrev_b32 v{T0}, 2, v1")
        A("s_waitcnt lgkmcnt(0)")
        A(f"ds_read_b32 v{BF}, v{T0} offset:{L_FIN+256}")
        A(f"v_lshlrev_b32 v{XF}, 16, v{XF}")
        A(f"v_lshlrev_b32 v{S4}, 16, v{S4}")
        A("s_waitcnt lgkmcnt(0)")
        self.rnd_bf16(BF, BF)
        A(f"v_add_f32 v{BF}, v{BF}, v{S4}")
        self.rnd_bf16(BF, BF)

    def ffn(self, WB, XD, MEAN, RS, VZ, VO, ACC, ACC2, VST, xn_pack):
        A = self.A
        T0, T1, T2 = 16, 17, 18
        A(f"v_lshlrev_b32 v{T1}, 2, v1"); A(f"v_add_u32 v{T1}, v{T1}, v2"); A(f"v_lshlrev_b32 v{T1}, 1, v{T1}")
        for b in range(8):
            A(f"buffer_load_ushort v{XD+b}, v{T1}, s[44:47], 0 offen offset:{128*b}")
        self.srd(48, 28, 512 * 3584)
        self.srd(52, 30, 3584)
        self.srd(56, 32, 1792 * 1024)
        A("s_lshl_b32 s7, s10, 8")
        A(f"v_lshlrev_b32 v{T0}, 4, v1"); A(f"v_and_b32 v{T2}, 1, v2"); A(f"v_lshlrev_b32 v{T2}, 3, v{T2}"); A(f"v_add_u32 v{T0}, v{T0}, v{T2}")
        B1 = 64
        A(f"buffer_load_dwordx2 v[{B1}:{B1+1}], v{T0}, s[52:55], s7 offen")
        A(f"v_mul_u32_u24 v{VO}, 3584, v2"); A(f"v_lshlrev_b32 v{T2}, 4, v1"); A(f"v_add3_u32 v{VO}, v{VO}, v{T2}, s7")
        A("s_waitcnt vmcnt(0)")
        for b in range(8): xn_pack(XD + b)
        A("s_mov_b32 s8, 0")
        for bt in range(4):
            for j in range(32):
                A(f"buffer_load_dwordx4 v[{WB+4*j}:{WB+4*j+3}], v{VO}, s[48:51], s8 offen{self.wpol}")
                A("s_add_u32 s8, s8, 14336")
                if self.pace: A(f"s_waitcnt vmcnt({self.pace-1})")
            self.diag_mfmas(32, lambda j: XD + 2 * bt + j // 16, WB, ACC, 31, first_zero=(bt == 0))
        self.nop(8)
        A(f"v_lshlrev_b32 v{B1+2}, 16, v{B1}"); A(f"v_and_b32 v{B1+3}, 0xffff0000, v{B1}")
        A(f"v_lshlrev_b32 v{B1+4}, 16, v{B1+1}"); A(f"v_and_b32 v{B1+5}, 0xffff0000, v{B1+1}")
        for r in range(4):
            self.rnd_bf16(ACC + r, ACC + r)
            A(f"v_add_f32 v{ACC+r}, v{ACC+r}, v{B1+2+r}")
            self.rnd_bf16(ACC + r, ACC + r)
            A(f"v_cmp_lt_f32 vcc, 0, v{ACC+r}"); self.nop(2)
            A(f"v_cndmask_b32 v{ACC+r}, 0, v{ACC+r}, vcc")
            A(f"v_mul_f32 v{ACC+r}, v{ACC+r}, v{ACC+r}")
        A(f"v_lshlrev_b32 v{T0}, 5, v1"); A(f"v_lshlrev_b32 v{T1}, 4, v2"); A(f"v_add_u32 v{T0}, v{T0}, v{T1}")
        A("s_mov_b32 exec_hi, 0")
        A(f"ds_write_b128 v{T0}, v[{ACC}:{ACC+3}] offset:{L_FS}")
        A("s_mov_b32 exec_hi, -1")
        A(f"v_lshlrev_b32 v{T0}, 2, v1"); A(f"v_add_u32 v{T0}, v{T0}, v2"); A(f"v_lshlrev_b32 v{T0}, 2, v{T0}")
        A("s_waitcnt lgkmcnt(0)")
        A(f"ds_read_b32 v{XD}, v{T0} offset:{L_FS}")
        A(f"ds_read_b32 v{XD+1}, v{T0} offset:{L_FS+256}")
        A("s_lshl_b32 s7, s10, 17")
        A(f"v_lshlrev_b32 v{VO}, 10, v2"); A(f"v_lshlrev_b32 v{T2}, 4, v1"); A(f"v_add3_u32 v{VO}, v{VO}, v{T2}, s7")
        A("s_waitcnt lgkmcnt(0)")
        A(f"v_cvt_pk_bf16_f32 v{XD}, v{XD}, v{XD}"); A(f"v_cvt_pk_bf16_f32 v{XD+1}, v{XD+1}, v{XD+1}")
        self.poll_counter(VZ, 0, 128, T1, 11, 12)
        for s in range(4):
            A("s_mov_b32 s8, 0")
            for j in range(32):
                A(f"buffer_load_dwordx4 v[{WB+4*j}:{WB+4*j+3}], v{VO}, s[56:59], s8 offen offset:{256*s}{self.wpol}")
                if j < 31: A("s_add_u32 s8, s8, 4096")
                if self.pace: A(f"s_waitcnt vmcnt({self.pace-1})")
            self.diag_mfmas(32, lambda j: XD + j // 16, WB, ACC, 31)
            self.nop(8)
            for r in range(4): A(f"v_min_u32 v{ACC2+r}, -2, v{ACC+r}")
            A("s_lshl_b32 s8, s10, 6"); A(f"s_add_u32 s8, s8, {W_PART + 8*s*PART_STRIDE + 256*64}")
            A("s_mov_b32 exec_hi, 0")
            A(f"buffer_store_dwordx4 v[{ACC2}:{ACC2+3}], v{VST}, s[64:67], s8 offen sc1")
            A("s_mov_b32 exec_hi, -1")
            A("s_waitcnt vmcnt(0)")

if __name__ == "__main__":
    import argparse
    ap = argparse.ArgumentParser()
    ap.add_argument("out"); ap.add_argument("--D", type=int, default=6); ap.add_argument("--mode", default="slow")
    ap.add_argument("--stamps", action="store_true"); ap.add_argument("--map", default="A"); ap.add_argument("--dbg", default="")
    a = ap.parse_args()
    open(a.out, "w").write(Gen(a.D, a.mode, a.stamps, a.map, a.dbg).build())
```

```python
import sys, struct
KN = "parallel_sum__mha_block_cached__dense_activation_squared_relu__decode"

def f32(x):
    return "0x%08x" % struct.unpack("<I", struct.pack("<f", x))[0]

HEADER = """; Kernarg layout for this problem (104 bytes, ptrs only, base s[0:1]):
;   offset  96: d_ws      2147483648 bytes workspace
"""

L_QP   = 0
L_OP   = 2048
L_ST   = 4096
L_FW   = 4160
L_TR   = 4176
L_FIN  = 4224
L_FC   = 4180
L_FS   = 4608
L_SC   = 8192
LDS_BYTES = L_SC + 4 * 8192

W_ST   = 0
W_PART = 0x10000
WS_BYTES = W_PART + 272 * 2048
NFFN = 14
FFN_WG0 = 32
SPIN_MAX = 200000

LOG2E = 1.4426950408889634
SCALE = 128 ** -0.5

def c_of_tile(i):
    for c in range(16):
        t = (c >> 3) | (((c >> 2) & 1) << 1) | ((c & 1) << 2) | (((c >> 1) & 1) << 3)
        if t == i:
            return c

class Gen:
    def __init__(self, D=6, mode="slow", stamps=False, wgmap="A", dbg=""):
        self.dbg = dbg.split(",")
        self.wpol = " nt" if "wnt" in self.dbg else ""
        self.NPRE = 48
        self.TRIG = 8
        self.pace = 0
        self.fk = 4 if mode == "fast" else 0
        self.fv = self.fk
        for o in self.dbg:
            if o.startswith("pre"): self.NPRE = int(o[3:])
            if o.startswith("trig"): self.TRIG = int(o[4:])
            if o.startswith("pace"): self.pace = int(o[4:])
            if o.startswith("fk"): self.fk = int(o[2:])
            if o.startswith("fv"): self.fv = int(o[2:])
        self.wgmap = wgmap
        self.L = []
        self.D = D
        self.mode = mode
        self.stamps = stamps
        self.nlab = 0
    def A(self, s):
        self.L.append("  " + s)
    def lab(self, name):
        self.L.append(name + ":")
    def newlab(self, p="L"):
        self.nlab += 1
        return f"{p}_{self.nlab}"
    def nop(self, n):
        while n > 0:
            k = min(n, 16)
            self.A(f"s_nop {k-1}")
            n -= k
    def rnd_bf16(self, d, s):
        self.A(f"v_cvt_pk_bf16_f32 v{d}, v{s}, v{s}")
        self.A(f"v_and_b32 v{d}, 0xffff0000, v{d}")
    def bfly(self, op, v, t, full=True):
        for ctl in ("quad_perm:[1,0,3,2]", "quad_perm:[2,3,0,1]", "row_half_mirror", "row_mirror"):
            self.nop(2)
            self.A(f"{op}_dpp v{v}, v{v}, v{v} {ctl} row_mask:0xf bank_mask:0xf")
        sw = ["v_permlane16_swap_b32"] + (["v_permlane32_swap_b32"] if full else [])
        for s in sw:
            self.A(f"v_mov_b32 v{t}, v{v}")
            self.nop(2)
            self.A(f"{s} v{v}, v{t}")
            self.nop(1)
            self.A(f"{op} v{v}, v{v}, v{t}")
    def srd(self, d, base, nbytes):
        self.A(f"s_mov_b32 s{d}, s{base}")
        self.A(f"s_and_b32 s{d+1}, s{base+1}, 0xffff")
        self.A(f"s_mov_b32 s{d+2}, {nbytes}")
        self.A(f"s_mov_b32 s{d+3}, 0x20000")
    def poll_counter(self, voff, off, target, vt, st, sc):
        l0 = self.newlab("L_poll"); l1 = self.newlab("L_polld")
        self.A(f"s_mov_b32 s{sc}, 0")
        self.lab(l0)
        self.A(f"buffer_load_dword v{vt}, v{voff}, s[60:63], 0 offen offset:{off} sc1")
        self.A("s_waitcnt vmcnt(0)")
        self.A(f"v_readfirstlane_b32 s{st}, v{vt}")
        self.A(f"s_add_u32 s{sc}, s{sc}, 1")
        self.A(f"s_cmp_ge_u32 s{st}, {target}")
        self.A(f"s_cbranch_scc1 {l1}")
        self.A(f"s_cmp_ge_u32 s{sc}, {SPIN_MAX}")
        self.A(f"s_cbranch_scc1 {l1}")
        self.A("s_sleep 64")
        self.A(f"s_branch {l0}")
        self.lab(l1)
    def wait_trigger(self, vz, vt, sc):
        l0 = self.newlab("L_tr"); l1 = self.newlab("L_trd")
        self.A(f"s_mov_b32 s{sc}, 0")
        self.lab(l0)
        self.A(f"ds_read_b32 v{vt}, v{vz} offset:{L_TR}")
        self.A("s_waitcnt lgkmcnt(0)")
        self.A(f"v_cmp_ne_u32 vcc, 1, v{vt}")
        self.A(f"s_add_u32 s{sc}, s{sc}, 1")
        self.A(f"s_cmp_ge_u32 s{sc}, {SPIN_MAX*20}"); self.A(f"s_cbranch_scc1 {l1}")
        self.A(f"s_cbranch_vccz {l1}")
        self.A("s_sleep 32")
        self.A(f"s_branch {l0}")
        self.lab(l1)
    def stamp(self, idx):
        if self.stamps:
            self.A(f"s_memrealtime s[{70+2*idx}:{71+2*idx}]")
    def stamp_out(self, n):
        if not self.stamps: return
        self.A("s_waitcnt lgkmcnt(0)")
        self.A("s_mov_b64 exec, -1")
        self.A("s_lshl_b32 s4, s2, 3"); self.A("s_add_u32 s4, s4, s3"); self.A("s_lshl_b32 s4, s4, 7"); self.A("s_add_u32 s4, s4, 0x100000")
        self.A("v_mov_b32 v1, s4")
        self.A("s_getreg_b32 s5, hwreg(HW_REG_XCC_ID)")
        for i in range(n):
            self.A(f"v_mov_b32 v2, s{70+2*i}"); self.A(f"v_mov_b32 v3, s{71+2*i}")
            self.A(f"global_store_dwordx2 v1, v[2:3], s[40:41] offset:{8*i}")
            self.nop(2)
        self.A("v_mov_b32 v2, s5")
        self.A(f"global_store_dword v1, v2, s[40:41] offset:120")

    def build(self):
        A = self.A; D = self.D
        self.L.append(HEADER.rstrip("\n"))
        self.L.append(f"; @launch grid=(256,1,1) block=(512,1,1) lds={LDS_BYTES}")
        self.L.append('.amdgcn_target "amdgcn-amd-amdhsa--gfx950"')
        self.L.append(".text"); self.L.append(f".globl {KN}_kernel"); self.L.append(".p2align 8")
        self.L.append(f".type {KN}_kernel,@function"); self.L.append(f"{KN}_kernel:")
        A("s_cmp_ge_u32 s2, 256"); A("s_cbranch_scc1 L_end")
        A("s_load_dwordx16 s[16:31], s[0:1], 0")
        A("s_load_dwordx8 s[32:39], s[0:1], 64")
        A("s_load_dwordx2 s[40:41], s[0:1], 96")
        self.stamp(0)
        A("v_lshrrev_b32 v1, 6, v0")
        A("v_and_b32 v0, 63, v0")
        A("v_readfirstlane_b32 s3, v1")
        A("v_and_b32 v1, 15, v0")
        A("v_lshrrev_b32 v2, 4, v0")
        if self.wgmap == "B":
            A("s_and_b32 s4, s2, 7"); A("s_lshl_b32 s4, s4, 2")
            A("s_lshr_b32 s5, s2, 3"); A("s_and_b32 s6, s5, 3"); A("s_add_u32 s4, s4, s6")
            A("s_lshr_b32 s5, s2, 5")
        else:
            A("s_lshr_b32 s4, s2, 3")
            A("s_and_b32 s5, s2, 7")
        A("v_lshrrev_b32 v3, 1, v1")
        A("v_and_b32 v8, 1, v1")
        A("v_mov_b32 v9, 0xffff")
        A("v_lshlrev_b32 v8, 4, v8")
        A("v_lshlrev_b32 v9, v8, v9")
        for k in range(4):
            A(f"v_cmp_eq_u32 vcc, {k}, v3")
            self.nop(2)
            A(f"v_cndmask_b32 v{4+k}, 0, v9, vcc")
        A("s_cmp_ge_u32 s3, 4")
        A("s_cbranch_scc1 L_helper")
        self.stream_wave()
        self.lab("L_helper")
        self.helper_wave()
        self.lab("L_end"); A("s_endpgm")
        self.L.append('.section .rodata,"a"'); self.L.append(".p2align 6"); self.L.append(f".amdhsa_kernel {KN}_kernel")
        A(".amdhsa_next_free_vgpr 256"); A(".amdhsa_next_free_sgpr 100"); A(".amdhsa_accum_offset 256")
        A(".amdhsa_group_segment_fixed_size 0"); A(".amdhsa_kernarg_size 104"); A(".amdhsa_user_sgpr_count 2")
        A(".amdhsa_user_sgpr_kernarg_segment_ptr 1"); A(".amdhsa_system_sgpr_workgroup_id_x 1")
        self.L.append(".end_amdhsa_kernel")
        return "\n".join(self.L) + "\n"

    def stream_wave(self):
        A = self.A; D = self.D
        VOFF = 10; Q = 12
        RB = 64
        P = 32
        T0, T1 = 16, 17
        M, LS = 18, 19
        SCA = 20
        PK = 21; SN = 22
        AA = (24, 28)
        ACC = 48
        TQ = 52
        if "noprio" not in self.dbg: A("s_setprio 2")
        A("s_waitcnt lgkmcnt(0)")
        A("s_lshl_b32 s6, s4, 24"); A("s_lshl_b32 s7, s5, 21"); A("s_add_u32 s6, s6, s7")
        for sd, sb in ((44, 18), (48, 20)):
            A(f"s_add_u32 s{sd}, s{sb}, s6"); A(f"s_addc_u32 s{sd+1}, s{sb+1}, 0"); A(f"s_and_b32 s{sd+1}, s{sd+1}, 0xffff")
            A(f"s_mov_b32 s{sd+2}, 0x200000"); A(f"s_mov_b32 s{sd+3}, 0x20000")
        A("s_lshl_b32 s7, s3, 10")
        A(f"v_lshlrev_b32 v{VOFF}, 4, v0"); A(f"v_add_u32 v{VOFF}, s7, v{VOFF}")
        A("s_mov_b32 s8, 0")
        NPRE = self.NPRE
        def slot_reg(k):
            if k < 16 or k >= NPRE: return RB + 4 * (k % 16)
            return 128 + 4 * (k - 16)
        def load(k, srd, reg=None):
            b = RB + 4 * (k % 16) if reg is None else reg
            A(f"buffer_load_dwordx4 v[{b}:{b+3}], v{VOFF}, s[{srd}:{srd+3}], s8 offen nt")
            A("s_add_u32 s8, s8, 4096")
        DW = D - 1 if self.mode == "slow" else D
        for i in range(min(NPRE, DW)): load(i, 44, slot_reg(i))
        A("s_mov_b32 s10, 0xaaaaaaaa"); A("s_mov_b32 s11, 0xaaaaaaaa")
        A("s_mov_b32 s12, 0xcccccccc"); A("s_mov_b32 s13, 0xcccccccc")
        A(f"s_mov_b32 s14, {f32(SCALE)}"); A(f"s_mov_b32 s15, {f32(LOG2E)}")
        A(f"v_mov_b32 v{M}, 0xff7fffff"); A(f"v_mov_b32 v{LS}, 0")
        A(f"s_lshl_b32 s7, s3, 13"); A(f"s_add_u32 s7, s7, {L_SC}")
        A(f"v_lshlrev_b32 v{SCA}, 2, v0"); A(f"v_add_u32 v{SCA}, s7, v{SCA}")
        for r in range(4): A(f"v_mov_b32 v{ACC+r}, 0")
        A(f"v_lshlrev_b32 v{T0}, 5, v1")
        def set_mode(nfast):
            A(f"s_cmp_lt_u32 s3, {nfast}"); A("s_cselect_b64 vcc, -1, 0")
        set_mode(self.fk)
        for i in range(DW, NPRE):
            A(f"s_waitcnt vmcnt({DW-1})")
            load(i, 44, slot_reg(i))
        self.stamp(4)
        A("s_barrier")
        self.stamp(1)
        tq = list(range(P, P + 16)) + list(range(TQ, TQ + 12)) + list(range(AA[0], AA[0] + 4))
        for h in range(4):
            for hf in range(2):
                r = tq[8 * h + 4 * hf]
                A(f"ds_read_b128 v[{r}:{r+3}], v{T0} offset:{L_QP+512*h+16*hf}")
        A("s_waitcnt lgkmcnt(0)")
        for e in range(8):
            A(f"v_add_f32 v{tq[e]}, v{tq[e]}, v{tq[8+e]}")
            A(f"v_add_f32 v{tq[16+e]}, v{tq[16+e]}, v{tq[24+e]}")
        for e in range(8):
            A(f"v_add_f32 v{tq[e]}, v{tq[e]}, v{tq[16+e]}")
        for k in range(4):
            A(f"v_cvt_pk_bf16_f32 v{Q+k}, v{tq[2*k]}, v{tq[2*k+1]}")
        def wait_tile(n):
            A(f"s_waitcnt vmcnt({n})")
        def mode_wait():
            l = self.newlab("L_m")
            A(f"s_cbranch_vccnz {l}")
            A(f"s_waitcnt vmcnt({D-2})")
            self.lab(l)
        def dots(i, reg=None):
            b = RB + 4 * i if reg is None else reg
            if "nok" in self.dbg: return
            A(f"v_dot2_f32_bf16 v{P+i}, v{b}, v{Q}, 0")
            for k in range(1, 4):
                A(f"v_dot2_f32_bf16 v{P+i}, v{b+k}, v{Q+k}, v{P+i}")
        def l1(a, b):
            A(f"v_add_f32_dpp v{P+a}, v{P+a}, v{P+a} row_ror:8 row_mask:0xf bank_mask:0x3")
            A(f"v_add_f32_dpp v{P+a}, v{P+b}, v{P+b} row_ror:8 row_mask:0xf bank_mask:0xc")
        def l2(a, b):
            A(f"v_add_f32_dpp v{P+a}, v{P+a}, v{P+a} row_half_mirror row_mask:0xf bank_mask:0x5")
            A(f"v_add_f32_dpp v{P+a}, v{P+b}, v{P+b} row_half_mirror row_mask:0xf bank_mask:0xa")
        def l34(a, b, sm, qp):
            A(f"v_cndmask_b32 v{T0}, v{P+b}, v{P+a}, s[{sm}:{sm+1}]")
            A(f"v_cndmask_b32 v{T1}, v{P+a}, v{P+b}, s[{sm}:{sm+1}]")
            self.nop(2)
            A(f"v_add_f32_dpp v{P+a}, v{T0}, v{T1} quad_perm:{qp} row_mask:0xf bank_mask:0xf")
        def combos_after(i):
            if "nok" in self.dbg: return
            if i >= 2 and i % 2 == 0: l1(i - 2, i - 1)
            if i >= 5 and i % 4 == 1: l2(i - 5, i - 3)
            if i == 11: l34(0, 4, 10, "[1,0,3,2]")
        def finish_iter():
            self.nop(3)
            l1(14, 15)
            self.nop(2)
            l2(12, 14)
            self.nop(1)
            l34(8, 12, 10, "[1,0,3,2]")
            self.nop(1)
            l34(0, 8, 12, "[2,3,0,1]")
            S = P
            self.rnd_bf16(S, S)
            A(f"v_mul_f32 v{S}, s14, v{S}")
            self.rnd_bf16(S, S)
            A(f"ds_write_b32 v{SCA}, v{S}")
            A(f"v_add_u32 v{SCA}, 256, v{SCA}")
            A(f"v_max_f32 v{T0}, v{M}, v{S}")
            A(f"v_sub_f32 v{T1}, v{M}, v{T0}")
            A(f"v_sub_f32 v{S}, v{S}, v{T0}")
            A(f"v_mul_f32 v{T1}, s15, v{T1}")
            A(f"v_mul_f32 v{S}, s15, v{S}")
            A(f"v_exp_f32 v{T1}, v{T1}")
            A(f"v_exp_f32 v{S}, v{S}")
            A(f"v_mov_b32 v{M}, v{T0}")
            A(f"v_fma_f32 v{LS}, v{LS}, v{T1}, v{S}")
        NCU = NPRE + 16
        issued = NPRE
        last_issue = NCU + D
        ratio = NPRE // 16
        for t in range(NCU):
            need = issued - 1 - t
            wait_tile(min(need, 63))
            dots(t % 16, slot_reg(t))
            combos_after(t % 16)
            if t % 16 == 15: finish_iter()
            want = False
            if t < NPRE:
                want = (t % ratio == ratio - 1)
            else:
                k = issued - NCU
                want = (t - NPRE + 1) * D >= (k + 1) * 16
            while want and issued < last_issue:
                assert issued - 16 <= t if issued >= NCU else (issued % 16) <= t
                A(f"s_waitcnt vmcnt({DW-1})")
                load(issued, 44); issued += 1
                want = False
        assert issued == last_issue, (issued, last_issue)
        A(f"s_mov_b32 s9, {31 - NCU // 16}")
        self.lab("L_kloop")
        for i in range(16):
            wait_tile(D - 1); mode_wait(); load(i + D, 44); dots(i); combos_after(i)
        finish_iter()
        A("s_sub_u32 s9, s9, 1"); A("s_cmp_lg_u32 s9, 0"); A("s_cbranch_scc1 L_kloop")
        for i in range(16):
            wait_tile(D - 1); mode_wait()
            if i + D == 16: A("s_mov_b32 s8, 0")
            load(i + D, 44 if i + D < 16 else 48); dots(i); combos_after(i)
        finish_iter()
        self.stamp(2)
        set_mode(self.fv)
        A(f"v_subrev_u32 v{SCA}, 8192, v{SCA}")
        A(f"ds_read_b32 v{SN}, v{SCA}")
        A(f"v_mov_b32 v{P}, v{M}")
        self.bfly("v_max_f32", P, T0)
        A(f"v_sub_f32 v{T1}, v{M}, v{P}")
        A(f"v_mul_f32 v{T1}, s15, v{T1}")
        A(f"v_exp_f32 v{T1}, v{T1}")
        A(f"v_mov_b32 v{M}, v{P}")
        A(f"v_mul_f32 v{P+1}, v{LS}, v{T1}")
        self.bfly("v_add_f32", P + 1, T0)
        A(f"v_mov_b32 v{P+2}, 1"); A(f"v_mov_b32 v{P+3}, 0")
        A(f"s_lshl_b32 s7, s3, 4"); A(f"s_add_u32 s7, s7, {L_ST}"); A(f"v_mov_b32 v{T0}, s7")
        A("s_mov_b64 exec, 1")
        A(f"ds_write_b128 v{T0}, v[{P}:{P+3}]")
        A("s_mov_b64 exec, -1")
        def v_iter(last):
            A("s_waitcnt lgkmcnt(0)")
            A(f"v_sub_f32 v{PK}, v{SN}, v{M}")
            A(f"v_mul_f32 v{PK}, s15, v{PK}")
            A(f"v_exp_f32 v{PK}, v{PK}")
            if not last:
                A(f"v_add_u32 v{SCA}, 256, v{SCA}")
                A(f"ds_read_b32 v{SN}, v{SCA}")
            else:
                self.nop(1)
            A(f"v_cvt_pk_bf16_f32 v{PK}, v{PK}, v{PK}")
            self.nop(2)
            for i in range(16):
                a = AA[i % 2]
                for k in range(4 if "nov" not in self.dbg else 0):
                    A(f"v_and_b32_dpp v{a+k}, v{PK}, v{4+k} row_newbcast:{c_of_tile(i)} row_mask:0xf bank_mask:0xf")
                if last and i + D >= 16:
                    wait_tile(15 - i); self.nop(1)
                else:
                    wait_tile(D - 1); mode_wait(); load(i + D, 48)
                b = RB + 4 * i
                if "nov" not in self.dbg and "nomfma" not in self.dbg:
                    A(f"v_mfma_f32_16x16x32_bf16 v[{ACC}:{ACC+3}], v[{a}:{a+3}], v[{b}:{b+3}], v[{ACC}:{ACC+3}]")
        A("s_mov_b32 s9, 31")
        self.lab("L_vloop")
        v_iter(False)
        A(f"s_cmp_lg_u32 s9, {self.TRIG}"); A("s_cbranch_scc1 L_notrig")
        A(f"v_mov_b32 v{T0}, {L_TR}"); A(f"v_mov_b32 v{T1}, 1")
        A(f"ds_write_b32 v{T0}, v{T1}")
        self.lab("L_notrig")
        A("s_sub_u32 s9, s9, 1"); A("s_cmp_lg_u32 s9, 0"); A("s_cbranch_scc1 L_vloop")
        A(f"s_lshl_b32 s7, s3, 9"); A(f"s_add_u32 s7, s7, {L_OP}")
        A(f"v_lshlrev_b32 v{T0}, 5, v1"); A(f"v_lshlrev_b32 v{T1}, 4, v2"); A(f"v_add3_u32 v{T0}, v{T0}, v{T1}, s7")
        v_iter(True)
        A("s_mov_b32 exec_hi, 0")
        self.nop(8)
        A(f"ds_write_b128 v{T0}, v[{ACC}:{ACC+3}]")
        A("s_waitcnt lgkmcnt(0)")
        A("s_barrier")
        self.stamp(3)
        self.stamp_out(5)
        A("s_endpgm")

    def diag_mfmas(self, n, pk_of, wb, acc, waitbase, first_zero=True, hilo=False, sel=None, tb=None):
        A = self.A
        AA = (24, 28)
        def build(j):
            a = AA[j % 2]
            if not hilo:
                for k in range(4):
                    A(f"v_and_b32_dpp v{a+k}, v{pk_of(j)}, v{4+k} row_newbcast:{j%16} row_mask:0xf bank_mask:0xf")
            else:
                A(f"v_mov_b32_dpp v{tb}, v{pk_of(j)} row_newbcast:{j%16} row_mask:0xf bank_mask:0xf")
                for k in range(4):
                    A(f"v_perm_b32 v{a+k}, v{tb}, v{tb}, v{sel+k}")
        build(0)
        for j in range(n):
            if j + 1 < n: build(j + 1)
            else: self.nop(2)
            if waitbase is not None: A(f"s_waitcnt vmcnt({waitbase - j})")
            a = AA[j % 2]; b = wb + 4 * j
            c = "0" if (j == 0 and first_zero) else f"v[{acc}:{acc+3}]"
            A(f"v_mfma_f32_16x16x32_bf16 v[{acc}:{acc+3}], v[{a}:{a+3}], v[{b}:{b+3}], {c}")

    def check_flags(self, vt, va, sc):
        A = self.A
        l0 = self.newlab("L_fl"); l1 = self.newlab("L_fld")
        A(f"v_and_b32 v{va}, 31, v0"); A(f"v_lshlrev_b32 v{va}, 2, v{va}")
        A(f"s_mov_b32 s{sc}, 0")
        self.lab(l0)
        A(f"buffer_load_dword v{vt}, v{va}, s[60:63], 0 offen sc1")
        A("s_waitcnt vmcnt(0)")
        A(f"v_cmp_eq_u32 vcc, 0, v{vt}")
        A(f"s_add_u32 s{sc}, s{sc}, 1")
        A(f"s_cmp_ge_u32 s{sc}, {SPIN_MAX}"); A(f"s_cbranch_scc1 {l1}")
        A(f"s_cbranch_vccz {l1}")
        A("s_sleep 64")
        A(f"s_branch {l0}")
        self.lab(l1)

    def wloads(self, WB, VO, srd, step, imm=0, pace=0):
        A = self.A
        A("s_mov_b32 s8, 0")
        for j in range(32):
            o = f" offset:{imm}" if imm else ""
            A(f"buffer_load_dwordx4 v[{WB+4*j}:{WB+4*j+3}], v{VO}, s[{srd}:{srd+3}], s8 offen{o}{self.wpol}")
            if j < 31: A(f"s_add_u32 s8, s8, {step}")
            if pace: A(f"s_waitcnt vmcnt({pace-1})")

    def helper_wave(self):
        A = self.A
        WB = 128
        XV = 32
        XD = 44
        T0, T1, T2 = 16, 17, 18
        MEAN, RS = 19, 20
        VZ = 21
        VO = 22
        VL = 23
        VD = 46
        VM = 48
        ACC = 52
        SEL = 56
        ACC2 = 60
        G = 64
        A("s_sub_u32 s9, s3, 4")
        A("s_waitcnt lgkmcnt(0)")
        self.stamp(9)
        self.srd(44, 16, 1024)
        self.srd(48, 22, 512 * 8192)
        A(f"v_lshlrev_b32 v{T0}, 4, v0")
        A(f"buffer_load_dwordx4 v[{XV}:{XV+3}], v{T0}, s[44:47], 0 offen")
        A(f"v_lshlrev_b32 v{VD}, 2, v1"); A(f"v_add_u32 v{VD}, v{VD}, v2"); A(f"v_lshlrev_b32 v{T1}, 1, v{VD}")
        A("s_lshl_b32 s7, s9, 8")
        A(f"buffer_load_ushort v{XD}, v{T1}, s[44:47], s7 offen")
        A(f"buffer_load_ushort v{XD+1}, v{T1}, s[44:47], s7 offen offset:128")
        A("s_lshl_b32 s7, s4, 8"); A("s_lshl_b32 s8, s9, 20"); A("s_add_u32 s7, s7, s8")
        A(f"v_lshlrev_b32 v{VO}, 13, v2"); A(f"v_lshlrev_b32 v{T2}, 4, v1"); A(f"v_add3_u32 v{VO}, v{VO}, v{T2}, s7")
        self.wloads(WB, VO, 48, 32768)
        self.srd(60, 38, 256)
        self.srd(64, 40, WS_BYTES)
        self.srd(52, 40, WS_BYTES)
        A("s_cmp_lt_u32 s2, 32"); A(f"s_cselect_b32 s54, {WS_BYTES}, 0")
        for r in range(4): A(f"v_mov_b32 v{VM+r}, -1")
        A("s_lshl_b32 s7, s2, 14"); A("s_lshl_b32 s8, s9, 12"); A("s_add_u32 s7, s7, s8"); A(f"s_add_u32 s7, s7, {W_PART}")
        for k in range(4):
            A(f"buffer_store_dwordx4 v[{VM}:{VM+3}], v{T0}, s[52:55], s7 offen offset:{1024*k} sc1")
        A("s_lshl_b32 s7, s2, 11"); A("s_lshl_b32 s8, s9, 10"); A("s_add_u32 s7, s7, s8"); A(f"s_add_u32 s7, s7, {W_PART + 256*2048 - 1024}")
        A(f"s_cmp_lt_u32 s2, {NFFN}"); A(f"s_cselect_b32 s7, s7, {WS_BYTES}")
        A("s_cmp_eq_u32 s9, 3"); A(f"s_cselect_b32 s7, {WS_BYTES}, s7")
        A("s_lshl_b32 s8, s2, 10"); A(f"s_add_u32 s8, s8, {W_ST}")
        A("s_cmp_eq_u32 s9, 0"); A("s_cselect_b32 s7, s8, s7")
        A(f"buffer_store_dwordx4 v[{VM}:{VM+3}], v{T0}, s[52:55], s7 offen sc1")
        NS = 5
        A(f"v_mov_b32 v{VZ}, 0")
        A(f"v_lshlrev_b32 v{VD}, 2, v{VD}")
        A(f"v_lshlrev_b32 v{VL}, 5, v1"); A(f"v_and_b32 v{T1}, 1, v2"); A(f"v_lshlrev_b32 v{T1}, 4, v{T1}"); A(f"v_add_u32 v{VL}, v{VL}, v{T1}")
        A(f"v_lshlrev_b32 v{T2}, 2, v0")
        A("s_mov_b32 exec_hi, 0")
        A(f"ds_write_b32 v{T2}, v{VZ} offset:{L_ST}")
        A("s_mov_b64 exec, -1")
        self.stamp(10)
        A(f"s_waitcnt vmcnt({34+NS})")
        self.stamp(11)
        U = XV + 4
        for k in range(4):
            A(f"v_lshlrev_b32 v{U+2*k}, 16, v{XV+k}")
            A(f"v_and_b32 v{U+2*k+1}, 0xffff0000, v{XV+k}")
        A(f"v_add_f32 v{MEAN}, v{U}, v{U+1}")
        for e in range(2, 8): A(f"v_add_f32 v{MEAN}, v{MEAN}, v{U+e}")
        self.bfly("v_add_f32", MEAN, T0)
        A(f"v_mul_f32 v{MEAN}, {f32(1.0/512)}, v{MEAN}")
        for e in range(8): A(f"v_sub_f32 v{U+e}, v{U+e}, v{MEAN}")
        A(f"v_mul_f32 v{RS}, v{U}, v{U}")
        for e in range(1, 8): A(f"v_fmac_f32 v{RS}, v{U+e}, v{U+e}")
        self.bfly("v_add_f32", RS, T0)
        A(f"v_mul_f32 v{RS}, {f32(1.0/512)}, v{RS}")
        self.rnd_bf16(MEAN, MEAN)
        self.rnd_bf16(RS, RS)
        A(f"v_add_f32 v{RS}, {f32(1e-5)}, v{RS}")
        self.rnd_bf16(RS, RS)
        A(f"v_sqrt_f32 v{RS}, v{RS}")
        self.nop(1)
        self.rnd_bf16(RS, RS)
        A(f"v_rcp_f32 v{RS}, v{RS}")
        def xn_pack(r):
            A(f"v_lshlrev_b32 v{r}, 16, v{r}")
            A(f"v_sub_f32 v{r}, v{r}, v{MEAN}")
            self.rnd_bf16(r, r)
            A(f"v_mul_f32 v{r}, v{r}, v{RS}")
            A(f"v_cvt_pk_bf16_f32 v{r}, v{r}, v{r}")
        self.stamp(12)
        A(f"s_waitcnt vmcnt({32+NS})")
        xn_pack(XD); xn_pack(XD + 1)
        self.nop(2)
        self.stamp(7)
        self.diag_mfmas(32, lambda j: XD + j // 16, WB, ACC, 31 + NS)
        A(f"s_lshl_b32 s7, s9, 9")
        A(f"v_add_u32 v{T0}, s7, v{VL}")
        A("s_mov_b32 exec_hi, 0")
        self.nop(6)
        A(f"ds_write_b128 v{T0}, v[{ACC}:{ACC+3}] offset:{L_QP}")
        A("s_mov_b32 exec_hi, -1")
        self.stamp(8)
        A("s_waitcnt vmcnt(0) lgkmcnt(0)")
        A("s_barrier")
        self.stamp(1)
        lskip = self.newlab("L_noflag")
        A("s_cmp_ge_u32 s2, 32"); A(f"s_cbranch_scc1 {lskip}")
        A("s_cmp_lg_u32 s9, 0"); A(f"s_cbranch_scc1 {lskip}")
        A(f"v_mov_b32 v{T1}, 1"); A("s_lshl_b32 s7, s2, 2")
        A("s_mov_b64 exec, 1")
        A(f"buffer_store_dword v{T1}, v{VZ}, s[60:63], s7 offen sc1")
        A("s_mov_b64 exec, -1")
        self.lab(lskip)
        lnf = self.newlab("L_noffn")
        A(f"s_sub_u32 s10, s2, {FFN_WG0}"); A(f"s_cmp_ge_u32 s10, {NFFN}"); A(f"s_cbranch_scc1 {lnf}")
        if "noffn" not in self.dbg: self.ffn(WB, XD, VZ, VO, VL, VD, ACC, ACC2, G)
        self.lab(lnf)
        self.srd(48, 24, 4096 * 1024)
        A("s_lshl_b32 s7, s4, 17"); A("s_lshl_b32 s8, s9, 8"); A("s_add_u32 s7, s7, s8")
        A(f"v_lshlrev_b32 v{VO}, 10, v2"); A(f"v_lshlrev_b32 v{T2}, 4, v1"); A(f"v_add3_u32 v{VO}, v{VO}, v{T2}, s7")
        self.wloads(WB, VO, 48, 4096, pace=self.pace)
        A(f"v_mov_b32 v{T0}, 0x0100"); A(f"v_mov_b32 v{T1}, 0x0302")
        A("v_cmp_gt_u32 vcc, 8, v1"); self.nop(2)
        A(f"v_cndmask_b32 v{T0}, v{T1}, v{T0}, vcc")
        A(f"v_lshlrev_b32 v{T1}, 16, v{T0}"); A(f"v_or_b32 v{T0}, v{T0}, v{T1}")
        A(f"v_and_b32 v{T1}, 7, v1"); A(f"v_lshrrev_b32 v{T2}, 1, v{T1}")
        A(f"v_and_b32 v{T1}, 1, v1"); A(f"v_lshlrev_b32 v{T1}, 4, v{T1}")
        A(f"v_mov_b32 v{ACC2}, 0xffff"); A(f"v_lshlrev_b32 v{T1}, v{T1}, v{ACC2}")
        A(f"v_mov_b32 v{ACC2}, 0x0c0c0c0c")
        A(f"v_bfi_b32 v{T0}, v{T1}, v{T0}, v{ACC2}")
        for k in range(4):
            A(f"v_cmp_eq_u32 vcc, {k}, v{T2}"); self.nop(2)
            A(f"v_cndmask_b32 v{SEL+k}, v{ACC2}, v{T0}, vcc")
        VG = 47
        A(f"v_lshrrev_b32 v{VG}, 2, v0"); A(f"v_lshlrev_b32 v{VG}, 11, v{VG}")
        A(f"v_and_b32 v{T0}, 3, v0"); A(f"v_lshlrev_b32 v{T0}, 4, v{T0}"); A(f"v_add_u32 v{VG}, v{VG}, v{T0}")
        lns = self.newlab("L_nostat")
        A("s_cmp_lg_u32 s9, 0"); A(f"s_cbranch_scc1 {lns}")
        if "nostat" not in self.dbg: self.stats(VZ, ACC2)
        self.lab(lns)
        BF, XF = 34, 35
        lnb = self.newlab("L_nob")
        A("s_cmp_lg_u32 s9, 1"); A(f"s_cbranch_scc1 {lnb}")
        A("s_cmp_ge_u32 s2, 32"); A(f"s_cbranch_scc1 {lnb}")
        if "noffn" not in self.dbg: self.bpart(BF, XF, ACC2, VZ, VG, G)
        self.lab(lnb)
        A("s_lshl_b32 s7, s2, 11"); A("s_lshl_b32 s8, s9, 9"); A("s_add_u32 s7, s7, s8"); A(f"s_add_u32 s7, s7, {W_PART}")
        A("s_lshl_b32 s12, s9, 17"); A("s_lshl_b32 s8, s2, 6"); A("s_add_u32 s12, s12, s8"); A(f"s_add_u32 s12, s12, {W_PART}")
        for k in range(1, 4): A(f"s_add_u32 s{12+k}, s12, {32768*k}")
        A("s_waitcnt vmcnt(0) lgkmcnt(0)")
        self.stamp(2)
        A("s_barrier")
        self.stamp(3)
        OP = 36
        FW = ACC2
        A(f"ds_read_b128 v[{FW}:{FW+3}], v{VZ} offset:{L_FW}")
        for w in range(4):
            A(f"ds_read_b32 v{OP+2*w}, v{VD} offset:{L_OP+512*w}")
            A(f"ds_read_b32 v{OP+2*w+1}, v{VD} offset:{L_OP+512*w+256}")
        A("s_waitcnt lgkmcnt(0)")
        for i in range(2):
            A(f"v_mul_f32 v{XD+i}, v{FW}, v{OP+i}")
            for w in range(1, 4): A(f"v_fmac_f32 v{XD+i}, v{FW+w}, v{OP+2*w+i}")
        for i in range(2):
            self.rnd_bf16(T1 + i, XD + i)
            A(f"v_sub_f32 v{T1+i}, v{XD+i}, v{T1+i}")
            A(f"v_cvt_pk_bf16_f32 v{XD+i}, v{XD+i}, v{T1+i}")
        self.nop(2)
        self.diag_mfmas(32, lambda j: XD + j // 16, WB, ACC, None, hilo=True, sel=SEL, tb=T0)
        self.nop(8)
        for r in range(4): A(f"v_mov_b32 v{ACC2+r}, v{ACC+r}")
        self.nop(1)
        for r in range(4): A(f"v_permlane32_swap_b32 v{ACC+r}, v{ACC2+r}")
        for r in range(4): A(f"v_add_f32 v{ACC+r}, v{ACC+r}, v{ACC2+r}")
        for r in range(4): A(f"v_min_u32 v{ACC+r}, -2, v{ACC+r}")
        A("s_mov_b32 exec_hi, 0")
        A(f"buffer_store_dwordx4 v[{ACC}:{ACC+3}], v{VL}, s[64:67], s7 offen sc1")
        A("s_mov_b32 exec_hi, -1")
        self.stamp(4)
        lfin = self.newlab("L_hend")
        A("s_cmp_ge_u32 s2, 32"); A(f"s_cbranch_scc1 {lfin}")
        lp = self.newlab("L_gat"); lpd = self.newlab("L_gatd")
        A("s_mov_b32 s10, 0")
        self.lab(lp)
        for k in range(4):
            A(f"buffer_load_dwordx4 v[{G+4*k}:{G+4*k+3}], v{VG}, s[64:67], s{12+k} offen sc1")
        A("s_waitcnt vmcnt(0)")
        A(f"v_max3_u32 v{T1}, v{G}, v{G+1}, v{G+2}")
        for k in range(3, 15, 2): A(f"v_max3_u32 v{T1}, v{T1}, v{G+k}, v{G+k+1}")
        A(f"v_max_u32 v{T1}, v{T1}, v{G+15}")
        A(f"v_cmp_eq_u32 vcc, -1, v{T1}")
        A("s_add_u32 s10, s10, 1")
        A(f"s_cmp_ge_u32 s10, {SPIN_MAX}"); A(f"s_cbranch_scc1 {lpd}")
        A(f"s_cbranch_vccnz {lp}")
        self.lab(lpd)
        self.stamp(5)
        for r in range(4):
            A(f"v_add_f32 v{G+r}, v{G+r}, v{G+4+r}")
            A(f"v_add_f32 v{G+8+r}, v{G+8+r}, v{G+12+r}")
        for r in range(4): A(f"v_add_f32 v{G+r}, v{G+r}, v{G+8+r}")
        self.quad_col_reduce(G, G + 4)
        A(f"s_lshl_b32 s7, s9, 6"); A(f"v_lshlrev_b32 v{T0}, 4, v0"); A(f"v_add_u32 v{T0}, s7, v{T0}")
        A("s_mov_b64 exec, 0xf")
        A(f"ds_write_b128 v{T0}, v[{G}:{G+3}] offset:{L_FIN}")
        A("s_mov_b64 exec, -1")
        A("s_waitcnt lgkmcnt(0)")
        A("s_barrier")
        A("s_cmp_lg_u32 s9, 1"); A(f"s_cbranch_scc1 {lfin}")
        A(f"v_lshlrev_b32 v{T0}, 2, v1")
        for h in range(4): A(f"ds_read_b32 v{G+h}, v{T0} offset:{L_FIN+64*h}")
        self.srd(44, 36, 1024)
        A("s_lshl_b32 s7, s2, 5")
        A(f"v_lshlrev_b32 v{T0}, 1, v1")
        A("s_waitcnt lgkmcnt(0)")
        A(f"v_add_f32 v{G}, v{G}, v{G+1}"); A(f"v_add_f32 v{G+2}, v{G+2}, v{G+3}"); A(f"v_add_f32 v{G}, v{G}, v{G+2}")
        self.rnd_bf16(G, G)
        A(f"v_add_f32 v{G}, v{XF}, v{G}")
        self.rnd_bf16(G, G)
        A(f"v_add_f32 v{G}, v{G}, v{BF}")
        A(f"v_cvt_pk_bf16_f32 v{G}, v{G}, v{G}")
        A("s_mov_b64 exec, 0xffff")
        A(f"buffer_store_short v{G}, v{T0}, s[44:47], s7 offen")
        self.stamp(6)
        self.lab(lfin)
        self.stamp_out(13)

    def quad_col_reduce(self, R, T):
        A = self.A
        for ctl in ("row_ror:4", "row_ror:8"):
            self.nop(2)
            for r in range(4):
                A(f"v_add_f32_dpp v{R+r}, v{R+r}, v{R+r} {ctl} row_mask:0xf bank_mask:0xf")
        for s in ("v_permlane16_swap_b32", "v_permlane32_swap_b32"):
            for r in range(4): A(f"v_mov_b32 v{T+r}, v{R+r}")
            self.nop(1)
            for r in range(4): A(f"{s} v{R+r}, v{T+r}")
            for r in range(4): A(f"v_add_f32 v{R+r}, v{R+r}, v{T+r}")

    def stats(self, VZ, S4):
        A = self.A
        T0, T1, T2 = 16, 17, 18
        A(f"v_and_b32 v{T0}, 3, v0"); A(f"v_lshlrev_b32 v{T0}, 4, v{T0}")
        l0 = self.newlab("L_st"); l1 = self.newlab("L_std")
        A("s_mov_b32 s10, 0")
        self.lab(l0)
        A(f"ds_read_b128 v[{S4}:{S4+3}], v{T0} offset:{L_ST}")
        A("s_waitcnt lgkmcnt(0)")
        A(f"v_cmp_ne_u32 vcc, 1, v{S4+2}")
        A("s_add_u32 s10, s10, 1")
        A(f"s_cmp_ge_u32 s10, {SPIN_MAX*20}"); A(f"s_cbranch_scc1 {l1}")
        A(f"s_cbranch_vccz {l1}")
        A("s_sleep 32")
        A(f"s_branch {l0}")
        self.lab(l1)
        self.check_flags(T1, T2, 10)
        A(f"v_min_u32 v{S4}, -2, v{S4}"); A(f"v_min_u32 v{S4+1}, -2, v{S4+1}")
        A("s_lshl_b32 s7, s4, 10"); A("s_lshl_b32 s8, s5, 5"); A("s_add_u32 s8, s8, s7")
        A(f"v_lshlrev_b32 v{T0}, 3, v0")
        A("s_mov_b64 exec, 0xf")
        A(f"buffer_store_dwordx2 v[{S4}:{S4+1}], v{T0}, s[64:67], s8 offen offset:{W_ST} sc1")
        A("s_mov_b64 exec, -1")
        self.wait_trigger(VZ, T1, 10)
        A(f"v_and_b32 v{T0}, 31, v0"); A(f"v_lshlrev_b32 v{T0}, 3, v{T0}")
        l0 = self.newlab("L_sg"); l1 = self.newlab("L_sgd")
        A("s_mov_b32 s10, 0")
        self.lab(l0)
        A(f"buffer_load_dwordx2 v[{S4}:{S4+1}], v{T0}, s[64:67], s7 offen offset:{W_ST} sc1")
        A("s_waitcnt vmcnt(0)")
        A(f"v_max_u32 v{T1}, v{S4}, v{S4+1}")
        A(f"v_cmp_eq_u32 vcc, -1, v{T1}")
        A("s_add_u32 s10, s10, 1")
        A(f"s_cmp_ge_u32 s10, {SPIN_MAX}"); A(f"s_cbranch_scc1 {l1}")
        A(f"s_cbranch_vccz {l1}")
        A("s_sleep 64")
        A(f"s_branch {l0}")
        self.lab(l1)
        A(f"v_mov_b32 v{S4+2}, v{S4}")
        self.bfly("v_max_f32", S4 + 2, T1, full=False)
        A(f"v_sub_f32 v{S4}, v{S4}, v{S4+2}")
        A(f"v_mul_f32 v{S4}, {f32(LOG2E)}, v{S4}")
        A(f"v_exp_f32 v{S4}, v{S4}")
        self.nop(1)
        A(f"v_mul_f32 v{S4+1}, v{S4+1}, v{S4}")
        self.bfly("v_add_f32", S4 + 1, T1, full=False)
        A(f"v_rcp_f32 v{S4+1}, v{S4+1}")
        self.nop(1)
        A(f"v_mul_f32 v{S4}, v{S4}, v{S4+1}")
        A(f"v_and_b32 v{T0}, 3, v0"); A(f"v_lshlrev_b32 v{T0}, 2, v{T0}")
        A("s_lshl_b32 s8, s5, 2")
        A("s_lshl_b64 s[12:13], 15, s8")
        A("s_mov_b64 exec, s[12:13]")
        A(f"ds_write_b32 v{T0}, v{S4} offset:{L_FW}")
        A("s_mov_b64 exec, -1")

    def bpart(self, BF, XF, S4, VZ, VG, G):
        A = self.A
        T0, T1, T2 = 16, 17, 18
        self.srd(52, 34, 1024)
        A("s_lshl_b32 s7, s2, 5")
        A(f"v_lshlrev_b32 v{T0}, 1, v1")
        A(f"buffer_load_ushort v{XF}, v{T0}, s[44:47], s7 offen")
        A(f"buffer_load_ushort v{S4}, v{T0}, s[52:55], s7 offen")
        self.wait_trigger(VZ, T1, 10)
        self.check_flags(T1, T2, 10)
        A(f"s_lshl_b32 s7, s2, 6"); A(f"s_add_u32 s7, s7, {W_PART + 256*2048}")
        for r in range(4): A(f"v_mov_b32 v{G+r}, 0")
        A(f"s_mov_b32 exec_hi, {(1 << (NFFN*4 - 32)) - 1}")
        lp = self.newlab("L_bg"); lpd = self.newlab("L_bgd")
        A("s_mov_b32 s10, 0")
        self.lab(lp)
        A(f"buffer_load_dwordx4 v[{G}:{G+3}], v{VG}, s[64:67], s7 offen sc1")
        A("s_waitcnt vmcnt(0)")
        A(f"v_max3_u32 v{T1}, v{G}, v{G+1}, v{G+2}")
        A(f"v_max_u32 v{T1}, v{T1}, v{G+3}")
        A(f"v_cmp_eq_u32 vcc, -1, v{T1}")
        A("s_add_u32 s10, s10, 1")
        A(f"s_cmp_ge_u32 s10, {SPIN_MAX}"); A(f"s_cbranch_scc1 {lpd}")
        A(f"s_cbranch_vccz {lpd}")
        A("s_sleep 64")
        A(f"s_branch {lp}")
        self.lab(lpd)
        A("s_mov_b32 exec_hi, -1")
        self.quad_col_reduce(G, G + 4)
        A(f"v_lshlrev_b32 v{T0}, 4, v0")
        A("s_mov_b64 exec, 0xf")
        A(f"ds_write_b128 v{T0}, v[{G}:{G+3}] offset:{L_FIN+256}")
        A("s_mov_b64 exec, -1")
        A(f"v_lshlrev_b32 v{T0}, 2, v1")
        A("s_waitcnt lgkmcnt(0)")
        A(f"ds_read_b32 v{BF}, v{T0} offset:{L_FIN+256}")
        A(f"v_lshlrev_b32 v{XF}, 16, v{XF}")
        A(f"v_lshlrev_b32 v{S4}, 16, v{S4}")
        A("s_waitcnt lgkmcnt(0)")
        self.rnd_bf16(BF, BF)
        A(f"v_add_f32 v{BF}, v{BF}, v{S4}")
        self.rnd_bf16(BF, BF)

    def ffn(self, WB, XD, VZ, VO, VL, VD, ACC, ACC2, G):
        A = self.A
        T0, T1, T2 = 16, 17, 18
        pace = self.pace
        self.srd(48, 28, 512 * 3584)
        self.srd(52, 30, 3584)
        self.srd(56, 32, 1792 * 1024)
        A("s_lshl_b32 s7, s10, 8")
        A(f"v_lshrrev_b32 v{T0}, 1, v{VD}")
        A(f"buffer_load_ushort v{G+8}, v{T0}, s[52:55], s7 offen")
        A(f"buffer_load_ushort v{G+9}, v{T0}, s[52:55], s7 offen offset:128")
        A(f"s_mul_i32 s8, s9, {128*3584}"); A("s_add_u32 s7, s7, s8")
        A(f"v_mul_u32_u24 v{VO}, 3584, v2"); A(f"v_lshlrev_b32 v{T2}, 4, v1"); A(f"v_add3_u32 v{VO}, v{VO}, v{T2}, s7")
        self.wloads(WB, VO, 48, 14336, pace=pace)
        self.diag_mfmas(32, lambda j: XD + j // 16, WB, ACC, 31)
        A(f"s_lshl_b32 s7, s9, 9")
        A(f"v_add_u32 v{T0}, s7, v{VL}")
        A(f"v_mov_b32 v{T1}, 1")
        A("s_mov_b32 exec_hi, 0")
        self.nop(6)
        A(f"ds_write_b128 v{T0}, v[{ACC}:{ACC+3}] offset:{L_FS}")
        A("s_mov_b64 exec, 1")
        A(f"ds_add_u32 v{VZ}, v{T1} offset:{L_FC}")
        A("s_mov_b64 exec, -1")
        A("s_lshl_b32 s7, s10, 17"); A("s_lshl_b32 s8, s9, 8"); A("s_add_u32 s7, s7, s8")
        A(f"v_lshlrev_b32 v{VO}, 10, v2"); A(f"v_lshlrev_b32 v{T2}, 4, v1"); A(f"v_add3_u32 v{VO}, v{VO}, v{T2}, s7")
        self.wloads(WB, VO, 56, 4096, pace=pace)
        l0 = self.newlab("L_fc"); l1 = self.newlab("L_fcd")
        A("s_mov_b32 s11, 0")
        self.lab(l0)
        A(f"ds_read_b32 v{T1}, v{VZ} offset:{L_FC}")
        A("s_waitcnt lgkmcnt(0)")
        A(f"v_cmp_ne_u32 vcc, 4, v{T1}")
        A("s_add_u32 s11, s11, 1")
        A(f"s_cmp_ge_u32 s11, {SPIN_MAX*20}"); A(f"s_cbranch_scc1 {l1}")
        A(f"s_cbranch_vccz {l1}")
        A("s_sleep 8")
        A(f"s_branch {l0}")
        self.lab(l1)
        for w in range(4):
            A(f"ds_read_b32 v{G+2*w}, v{VD} offset:{L_FS+512*w}")
            A(f"ds_read_b32 v{G+2*w+1}, v{VD} offset:{L_FS+512*w+256}")
        A("s_waitcnt lgkmcnt(0)")
        HP = G + 10
        for i in range(2):
            A(f"v_add_f32 v{G+i}, v{G+i}, v{G+2+i}"); A(f"v_add_f32 v{G+4+i}, v{G+4+i}, v{G+6+i}")
            A(f"v_add_f32 v{G+i}, v{G+i}, v{G+4+i}")
            self.rnd_bf16(G + i, G + i)
            A(f"v_lshlrev_b32 v{G+8+i}, 16, v{G+8+i}")
            A(f"v_add_f32 v{G+i}, v{G+i}, v{G+8+i}")
            self.rnd_bf16(G + i, G + i)
            A(f"v_cmp_lt_f32 vcc, 0, v{G+i}"); self.nop(2)
            A(f"v_cndmask_b32 v{G+i}, 0, v{G+i}, vcc")
            A(f"v_mul_f32 v{G+i}, v{G+i}, v{G+i}")
            A(f"v_cvt_pk_bf16_f32 v{HP+i}, v{G+i}, v{G+i}")
        self.check_flags(T1, T2, 11)
        self.diag_mfmas(32, lambda j: HP + j // 16, WB, ACC, None)
        self.nop(8)
        for r in range(4): A(f"v_min_u32 v{ACC2+r}, -2, v{ACC+r}")
        A("s_lshl_b32 s7, s10, 11"); A("s_lshl_b32 s8, s9, 9"); A("s_add_u32 s7, s7, s8"); A(f"s_add_u32 s7, s7, {W_PART + 256*2048}")
        A("s_mov_b32 exec_hi, 0")
        A(f"buffer_store_dwordx4 v[{ACC2}:{ACC2+3}], v{VL}, s[64:67], s7 offen sc1")
        A("s_mov_b32 exec_hi, -1")
        self.nop(2)

if __name__ == "__main__":
    import argparse
    ap = argparse.ArgumentParser()
    ap.add_argument("out"); ap.add_argument("--D", type=int, default=6); ap.add_argument("--mode", default="slow")
    ap.add_argument("--stamps", action="store_true"); ap.add_argument("--map", default="A"); ap.add_argument("--dbg", default="")
    a = ap.parse_args()
    open(a.out, "w").write(Gen(a.D, a.mode, a.stamps, a.map, a.dbg).build())
```

```python
import sys, struct
KN = "parallel_sum__mha_block_cached__dense_activation_squared_relu__decode"

def f32(x):
    return "0x%08x" % struct.unpack("<I", struct.pack("<f", x))[0]

HEADER = """; Kernarg layout for this problem (104 bytes, ptrs only, base s[0:1]):
;   offset   0: d_in[0] A_x  shape=(1, 1, 512) dtype=bfloat16 strides=(1024, 1024, 2) contiguous=True
;   offset   8: d_in[1] A_k_cache  shape=(1, 32, 65536, 128) dtype=bfloat16 strides=(536870912, 16777216, 256, 2) contiguous=True
;   offset  16: d_in[2] A_v_cache  shape=(1, 32, 65536, 128) dtype=bfloat16 strides=(536870912, 16777216, 256, 2) contiguous=True
;   offset  24: d_in[3] A_wq  shape=(512, 4096) dtype=bfloat16 strides=(8192, 2) contiguous=True
;   offset  32: d_in[4] A_wo  shape=(4096, 512) dtype=bfloat16 strides=(1024, 2) contiguous=True
;   offset  40: d_in[5] B_x  shape=(1, 1, 512) dtype=bfloat16 strides=(1024, 1024, 2) contiguous=True
;   offset  48: d_in[6] B_w1  shape=(512, 1792) dtype=bfloat16 strides=(3584, 2) contiguous=True
;   offset  56: d_in[7] B_b1  shape=(1792,) dtype=bfloat16 strides=(2,) contiguous=True
;   offset  64: d_in[8] B_w2  shape=(1792, 512) dtype=bfloat16 strides=(1024, 2) contiguous=True
;   offset  72: d_in[9] B_b2  shape=(512,) dtype=bfloat16 strides=(2,) contiguous=True
;   offset  80: d_out     shape=(1, 1, 512) dtype=bfloat16 (2 bytes/elem)
;   offset  96: d_ws      2147483648 bytes workspace
"""

L_QP   = 0
L_OP   = 2048
L_ST   = 4096
L_FW   = 4160
L_TR   = 4176
L_FIN  = 4224
L_FC   = 4180
L_CT   = 4184
L_PG   = 4192
L_FS   = 4608
L_SC   = 8192
LDS_BYTES = L_SC + 4 * 8192

W_ST   = 0
W_PG   = 0x8000
W_PART = 0x10000
WS_BYTES = W_PART + 272 * 2048
NFFN = 14
FFN_WG0 = 32
SPIN_MAX = 200000

LOG2E = 1.4426950408889634
SCALE = 128 ** -0.5

def c_of_tile(i):
    for c in range(16):
        t = (c >> 3) | (((c >> 2) & 1) << 1) | ((c & 1) << 2) | (((c >> 1) & 1) << 3)
        if t == i:
            return c

class Gen:
    def __init__(self, D=6, mode="slow", stamps=False, wgmap="A", dbg=""):
        self.dbg = dbg.split(",")
        self.wpol = " nt" if "wnt" in self.dbg else ""
        self.NPRE = 48
        self.TRIG = 8
        self.pace = 0
        self.wqpace = 0
        self.lo = 1
        self.ctl = "ctl" in self.dbg
        self.c0 = 0; self.gain = 16
        self.miles = [12, 22, 32, 40, 48, 54, 58, 61]
        self.fk = 4 if mode == "fast" else 0
        self.fv = self.fk
        for o in self.dbg:
            if o.startswith("pre"): self.NPRE = int(o[3:])
            if o.startswith("trig"): self.TRIG = int(o[4:])
            if o.startswith("pace"): self.pace = int(o[4:])
            if o.startswith("lo"): self.lo = int(o[2:])
            if o.startswith("c0"): self.c0 = int(o[2:])
            if o.startswith("gain"): self.gain = int(o[4:])
            if o.startswith("ms"): self.miles = [int(x) for x in o[2:].split("-")]
            if o.startswith("wqp"): self.wqpace = int(o[3:])
            if o.startswith("fk"): self.fk = int(o[2:])
            if o.startswith("fv"): self.fv = int(o[2:])
        self.wgmap = wgmap
        self.L = []
        self.D = D
        self.mode = mode
        self.stamps = stamps
        self.nlab = 0
    def A(self, s):
        self.L.append("  " + s)
    def lab(self, name):
        self.L.append(name + ":")
    def newlab(self, p="L"):
        self.nlab += 1
        return f"{p}_{self.nlab}"
    def nop(self, n):
        while n > 0:
            k = min(n, 16)
            self.A(f"s_nop {k-1}")
            n -= k
    def rnd_bf16(self, d, s):
        self.A(f"v_cvt_pk_bf16_f32 v{d}, v{s}, v{s}")
        self.A(f"v_and_b32 v{d}, 0xffff0000, v{d}")
    def bfly(self, op, v, t, full=True):
        for ctl in ("quad_perm:[1,0,3,2]", "quad_perm:[2,3,0,1]", "row_half_mirror", "row_mirror"):
            self.nop(2)
            self.A(f"{op}_dpp v{v}, v{v}, v{v} {ctl} row_mask:0xf bank_mask:0xf")
        sw = ["v_permlane16_swap_b32"] + (["v_permlane32_swap_b32"] if full else [])
        for s in sw:
            self.A(f"v_mov_b32 v{t}, v{v}")
            self.nop(2)
            self.A(f"{s} v{v}, v{t}")
            self.nop(1)
            self.A(f"{op} v{v}, v{v}, v{t}")
    def srd(self, d, base, nbytes):
        self.A(f"s_mov_b32 s{d}, s{base}")
        self.A(f"s_and_b32 s{d+1}, s{base+1}, 0xffff")
        self.A(f"s_mov_b32 s{d+2}, {nbytes}")
        self.A(f"s_mov_b32 s{d+3}, 0x20000")
    def poll_counter(self, voff, off, target, vt, st, sc):
        l0 = self.newlab("L_poll"); l1 = self.newlab("L_polld")
        self.A(f"s_mov_b32 s{sc}, 0")
        self.lab(l0)
        self.A(f"buffer_load_dword v{vt}, v{voff}, s[60:63], 0 offen offset:{off} sc1")
        self.A("s_waitcnt vmcnt(0)")
        self.A(f"v_readfirstlane_b32 s{st}, v{vt}")
        self.A(f"s_add_u32 s{sc}, s{sc}, 1")
        self.A(f"s_cmp_ge_u32 s{st}, {target}")
        self.A(f"s_cbranch_scc1 {l1}")
        self.A(f"s_cmp_ge_u32 s{sc}, {SPIN_MAX}")
        self.A(f"s_cbranch_scc1 {l1}")
        self.A("s_sleep 64")
        self.A(f"s_branch {l0}")
        self.lab(l1)
    def wait_trigger(self, vz, vt, sc):
        l0 = self.newlab("L_tr"); l1 = self.newlab("L_trd")
        self.A(f"s_mov_b32 s{sc}, 0")
        self.lab(l0)
        self.A(f"ds_read_b32 v{vt}, v{vz} offset:{L_TR}")
        self.A("s_waitcnt lgkmcnt(0)")
        self.A(f"v_cmp_ne_u32 vcc, 1, v{vt}")
        self.A(f"s_add_u32 s{sc}, s{sc}, 1")
        self.A(f"s_cmp_ge_u32 s{sc}, {SPIN_MAX*20}"); self.A(f"s_cbranch_scc1 {l1}")
        self.A(f"s_cbranch_vccz {l1}")
        self.A("s_sleep 32")
        self.A(f"s_branch {l0}")
        self.lab(l1)
    def stamp(self, idx):
        if self.stamps:
            self.A(f"s_memrealtime s[{70+2*idx}:{71+2*idx}]")
    def stamp_out(self, n):
        if not self.stamps: return
        self.A("s_waitcnt lgkmcnt(0)")
        self.A("s_mov_b64 exec, -1")
        self.A("s_lshl_b32 s4, s2, 3"); self.A("s_add_u32 s4, s4, s3"); self.A("s_lshl_b32 s4, s4, 7"); self.A("s_add_u32 s4, s4, 0x100000")
        self.A("v_mov_b32 v1, s4")
        self.A("s_getreg_b32 s5, hwreg(HW_REG_XCC_ID)")
        for i in range(n):
            self.A(f"v_mov_b32 v2, s{70+2*i}"); self.A(f"v_mov_b32 v3, s{71+2*i}")
            self.A(f"global_store_dwordx2 v1, v[2:3], s[40:41] offset:{8*i}")
            self.nop(2)
        self.A("v_mov_b32 v2, s5")
        self.A(f"global_store_dword v1, v2, s[40:41] offset:120")

    def build(self):
        A = self.A; D = self.D
        self.L.append(HEADER.rstrip("\n"))
        self.L.append(f"; @launch grid=(256,1,1) block=(512,1,1) lds={LDS_BYTES}")
        self.L.append('.amdgcn_target "amdgcn-amd-amdhsa--gfx950"')
        self.L.append(".text"); self.L.append(f".globl {KN}_kernel"); self.L.append(".p2align 8")
        self.L.append(f".type {KN}_kernel,@function"); self.L.append(f"{KN}_kernel:")
        A("s_cmp_ge_u32 s2, 256"); A("s_cbranch_scc1 L_end")
        A("s_load_dwordx16 s[16:31], s[0:1], 0")
        A("s_load_dwordx8 s[32:39], s[0:1], 64")
        A("s_load_dwordx2 s[40:41], s[0:1], 96")
        self.stamp(0)
        A("v_lshrrev_b32 v1, 6, v0")
        A("v_and_b32 v0, 63, v0")
        A("v_readfirstlane_b32 s3, v1")
        A("v_and_b32 v1, 15, v0")
        A("v_lshrrev_b32 v2, 4, v0")
        if self.wgmap == "B":
            A("s_and_b32 s4, s2, 7"); A("s_lshl_b32 s4, s4, 2")
            A("s_lshr_b32 s5, s2, 3"); A("s_and_b32 s6, s5, 3"); A("s_add_u32 s4, s4, s6")
            A("s_lshr_b32 s5, s2, 5")
        else:
            A("s_lshr_b32 s4, s2, 3")
            A("s_and_b32 s5, s2, 7")
        A("v_lshrrev_b32 v3, 1, v1")
        A("v_and_b32 v8, 1, v1")
        A("v_mov_b32 v9, 0xffff")
        A("v_lshlrev_b32 v8, 4, v8")
        A("v_lshlrev_b32 v9, v8, v9")
        for k in range(4):
            A(f"v_cmp_eq_u32 vcc, {k}, v3")
            self.nop(2)
            A(f"v_cndmask_b32 v{4+k}, 0, v9, vcc")
        A("s_cmp_ge_u32 s3, 4")
        A("s_cbranch_scc1 L_helper")
        self.stream_wave()
        self.lab("L_helper")
        self.helper_wave()
        self.lab("L_end"); A("s_endpgm")
        self.L.append('.section .rodata,"a"'); self.L.append(".p2align 6"); self.L.append(f".amdhsa_kernel {KN}_kernel")
        A(".amdhsa_next_free_vgpr 256"); A(".amdhsa_next_free_sgpr 100"); A(".amdhsa_accum_offset 256")
        A(".amdhsa_group_segment_fixed_size 0"); A(".amdhsa_kernarg_size 104"); A(".amdhsa_user_sgpr_count 2")
        A(".amdhsa_user_sgpr_kernarg_segment_ptr 1"); A(".amdhsa_system_sgpr_workgroup_id_x 1")
        self.L.append(".end_amdhsa_kernel")
        return "\n".join(self.L) + "\n"

    def stream_wave(self):
        A = self.A; D = self.D
        VOFF = 10; Q = 12
        RB = 64
        P = 32
        T0, T1 = 16, 17
        M, LS = 18, 19
        SCA = 20
        PK = 21; SN = 22
        AA = (24, 28)
        ACC = 48
        TQ = 52
        if "noprio" not in self.dbg: A("s_setprio 2")
        A("s_waitcnt lgkmcnt(0)")
        A("s_lshl_b32 s6, s4, 24"); A("s_lshl_b32 s7, s5, 21"); A("s_add_u32 s6, s6, s7")
        for sd, sb in ((44, 18), (48, 20)):
            A(f"s_add_u32 s{sd}, s{sb}, s6"); A(f"s_addc_u32 s{sd+1}, s{sb+1}, 0"); A(f"s_and_b32 s{sd+1}, s{sd+1}, 0xffff")
            A(f"s_mov_b32 s{sd+2}, 0x200000"); A(f"s_mov_b32 s{sd+3}, 0x20000")
        A("s_lshl_b32 s7, s3, 10")
        A(f"v_lshlrev_b32 v{VOFF}, 4, v0"); A(f"v_add_u32 v{VOFF}, s7, v{VOFF}")
        A("s_mov_b32 s8, 0")
        NPRE = self.NPRE
        def slot_reg(k):
            if k < 16 or k >= NPRE: return RB + 4 * (k % 16)
            return 128 + 4 * (k - 16)
        def load(k, srd, reg=None):
            b = RB + 4 * (k % 16) if reg is None else reg
            A(f"buffer_load_dwordx4 v[{b}:{b+3}], v{VOFF}, s[{srd}:{srd+3}], s8 offen nt")
            A("s_add_u32 s8, s8, 4096")
        DW = D - self.lo if self.mode == "slow" else D
        for i in range(min(NPRE, DW)): load(i, 44, slot_reg(i))
        A("s_mov_b32 s10, 0xaaaaaaaa"); A("s_mov_b32 s11, 0xaaaaaaaa")
        A("s_mov_b32 s12, 0xcccccccc"); A("s_mov_b32 s13, 0xcccccccc")
        A(f"s_mov_b32 s14, {f32(SCALE)}"); A(f"s_mov_b32 s15, {f32(LOG2E)}")
        A(f"v_mov_b32 v{M}, 0xff7fffff"); A(f"v_mov_b32 v{LS}, 0")
        A(f"s_lshl_b32 s7, s3, 13"); A(f"s_add_u32 s7, s7, {L_SC}")
        A(f"v_lshlrev_b32 v{SCA}, 2, v0"); A(f"v_add_u32 v{SCA}, s7, v{SCA}")
        for r in range(4): A(f"v_mov_b32 v{ACC+r}, 0")
        A(f"v_lshlrev_b32 v{T0}, 5, v1")
        def set_mode(nfast):
            A(f"s_cmp_lt_u32 s3, {nfast}"); A("s_cselect_b64 vcc, -1, 0")
        set_mode(self.fk)
        for i in range(DW, NPRE):
            A(f"s_waitcnt vmcnt({DW-1})")
            load(i, 44, slot_reg(i))
        self.stamp(4)
        A("s_barrier")
        self.stamp(1)
        tq = list(range(P, P + 16)) + list(range(TQ, TQ + 12)) + list(range(AA[0], AA[0] + 4))
        for h in range(4):
            for hf in range(2):
                r = tq[8 * h + 4 * hf]
                A(f"ds_read_b128 v[{r}:{r+3}], v{T0} offset:{L_QP+512*h+16*hf}")
        A("s_waitcnt lgkmcnt(0)")
        for e in range(8):
            A(f"v_add_f32 v{tq[e]}, v{tq[e]}, v{tq[8+e]}")
            A(f"v_add_f32 v{tq[16+e]}, v{tq[16+e]}, v{tq[24+e]}")
        for e in range(8):
            A(f"v_add_f32 v{tq[e]}, v{tq[e]}, v{tq[16+e]}")
        for k in range(4):
            A(f"v_cvt_pk_bf16_f32 v{Q+k}, v{tq[2*k]}, v{tq[2*k+1]}")
        def wait_tile(n):
            A(f"s_waitcnt vmcnt({n})")
        def mode_wait():
            l = self.newlab("L_m")
            A(f"s_cbranch_vccnz {l}")
            A(f"s_waitcnt vmcnt({D-1-self.lo})")
            self.lab(l)
        VPG, VCT, VZ0 = 23, 11, 9
        def ctl_top(wait=True):
            if not self.ctl: return
            if wait: A("s_waitcnt lgkmcnt(0)")
            A(f"v_readfirstlane_b32 s43, v{VCT}")
            A(f"v_mov_b32 v{T0}, s42")
            A(f"ds_write_b32 v{VPG}, v{T0}")
            A(f"ds_read_b32 v{VCT}, v{VZ0} offset:{L_CT}")
            A("s_cmp_lt_u32 s42, s43"); A("s_cselect_b64 vcc, -1, 0")
            A("s_add_u32 s42, s42, 1")
        def dots(i, reg=None):
            b = RB + 4 * i if reg is None else reg
            if "nok" in self.dbg: return
            A(f"v_dot2_f32_bf16 v{P+i}, v{b}, v{Q}, 0")
            for k in range(1, 4):
                A(f"v_dot2_f32_bf16 v{P+i}, v{b+k}, v{Q+k}, v{P+i}")
        def l1(a, b):
            A(f"v_add_f32_dpp v{P+a}, v{P+a}, v{P+a} row_ror:8 row_mask:0xf bank_mask:0x3")
            A(f"v_add_f32_dpp v{P+a}, v{P+b}, v{P+b} row_ror:8 row_mask:0xf bank_mask:0xc")
        def l2(a, b):
            A(f"v_add_f32_dpp v{P+a}, v{P+a}, v{P+a} row_half_mirror row_mask:0xf bank_mask:0x5")
            A(f"v_add_f32_dpp v{P+a}, v{P+b}, v{P+b} row_half_mirror row_mask:0xf bank_mask:0xa")
        def l34(a, b, sm, qp):
            A(f"v_cndmask_b32 v{T0}, v{P+b}, v{P+a}, s[{sm}:{sm+1}]")
            A(f"v_cndmask_b32 v{T1}, v{P+a}, v{P+b}, s[{sm}:{sm+1}]")
            self.nop(2)
            A(f"v_add_f32_dpp v{P+a}, v{T0}, v{T1} quad_perm:{qp} row_mask:0xf bank_mask:0xf")
        def combos_after(i):
            if "nok" in self.dbg: return
            if i >= 2 and i % 2 == 0: l1(i - 2, i - 1)
            if i >= 5 and i % 4 == 1: l2(i - 5, i - 3)
            if i == 11: l34(0, 4, 10, "[1,0,3,2]")
        def finish_iter():
            self.nop(3)
            l1(14, 15)
            self.nop(2)
            l2(12, 14)
            self.nop(1)
            l34(8, 12, 10, "[1,0,3,2]")
            self.nop(1)
            l34(0, 8, 12, "[2,3,0,1]")
            S = P
            if "noround" not in self.dbg: self.rnd_bf16(S, S)
            A(f"v_mul_f32 v{S}, s14, v{S}")
            if "noround" not in self.dbg: self.rnd_bf16(S, S)
            A(f"ds_write_b32 v{SCA}, v{S}")
            A(f"v_add_u32 v{SCA}, 256, v{SCA}")
            A(f"v_max_f32 v{T0}, v{M}, v{S}")
            A(f"v_sub_f32 v{T1}, v{M}, v{T0}")
            A(f"v_sub_f32 v{S}, v{S}, v{T0}")
            A(f"v_mul_f32 v{T1}, s15, v{T1}")
            A(f"v_mul_f32 v{S}, s15, v{S}")
            A(f"v_exp_f32 v{T1}, v{T1}")
            A(f"v_exp_f32 v{S}, v{S}")
            A(f"v_mov_b32 v{M}, v{T0}")
            A(f"v_fma_f32 v{LS}, v{LS}, v{T1}, v{S}")
        NCU = NPRE + 16
        issued = NPRE
        last_issue = NCU + D
        ratio = NPRE // 16
        for t in range(NCU):
            need = issued - 1 - t
            wait_tile(min(need, 63))
            dots(t % 16, slot_reg(t))
            combos_after(t % 16)
            if t % 16 == 15: finish_iter()
            want = False
            if t < NPRE:
                want = (t % ratio == ratio - 1)
            else:
                k = issued - NCU
                want = (t - NPRE + 1) * D >= (k + 1) * 16
            while want and issued < last_issue:
                assert issued - 16 <= t if issued >= NCU else (issued % 16) <= t
                A(f"s_waitcnt vmcnt({DW-1})")
                load(issued, 44); issued += 1
                want = False
        assert issued == last_issue, (issued, last_issue)
        A(f"s_mov_b32 s9, {31 - NCU // 16}")
        if self.ctl:
            A(f"s_mov_b32 s42, {NCU // 16}")
            A(f"v_mov_b32 v{VCT}, 0"); A(f"v_mov_b32 v{VZ0}, 0")
            A(f"s_lshl_b32 s7, s3, 2"); A(f"s_add_u32 s7, s7, {L_PG}"); A(f"v_mov_b32 v{VPG}, s7")
        self.lab("L_kloop")
        ctl_top()
        for i in range(16):
            wait_tile(D - 1); mode_wait(); load(i + D, 44); dots(i); combos_after(i)
        finish_iter()
        A("s_sub_u32 s9, s9, 1"); A("s_cmp_lg_u32 s9, 0"); A("s_cbranch_scc1 L_kloop")
        ctl_top()
        for i in range(16):
            wait_tile(D - 1); mode_wait()
            if i + D == 16: A("s_mov_b32 s8, 0")
            load(i + D, 44 if i + D < 16 else 48); dots(i); combos_after(i)
        finish_iter()
        self.stamp(2)
        if not self.ctl: set_mode(self.fv)
        A(f"v_subrev_u32 v{SCA}, 8192, v{SCA}")
        A(f"ds_read_b32 v{SN}, v{SCA}")
        A(f"v_mov_b32 v{P}, v{M}")
        self.bfly("v_max_f32", P, T0)
        A(f"v_sub_f32 v{T1}, v{M}, v{P}")
        A(f"v_mul_f32 v{T1}, s15, v{T1}")
        A(f"v_exp_f32 v{T1}, v{T1}")
        A(f"v_mov_b32 v{M}, v{P}")
        A(f"v_mul_f32 v{P+1}, v{LS}, v{T1}")
        self.bfly("v_add_f32", P + 1, T0)
        A(f"v_mov_b32 v{P+2}, 1"); A(f"v_mov_b32 v{P+3}, 0")
        A(f"s_lshl_b32 s7, s3, 4"); A(f"s_add_u32 s7, s7, {L_ST}"); A(f"v_mov_b32 v{T0}, s7")
        A("s_mov_b64 exec, 1")
        A(f"ds_write_b128 v{T0}, v[{P}:{P+3}]")
        A("s_mov_b64 exec, -1")
        def v_iter(last):
            A("s_waitcnt lgkmcnt(0)")
            if not last: ctl_top(False)
            A(f"v_sub_f32 v{PK}, v{SN}, v{M}")
            A(f"v_mul_f32 v{PK}, s15, v{PK}")
            A(f"v_exp_f32 v{PK}, v{PK}")
            if not last:
                A(f"v_add_u32 v{SCA}, 256, v{SCA}")
                A(f"ds_read_b32 v{SN}, v{SCA}")
            else:
                self.nop(1)
            A(f"v_cvt_pk_bf16_f32 v{PK}, v{PK}, v{PK}")
            self.nop(2)
            for i in range(16):
                a = AA[i % 2]
                for k in range(4 if "nov" not in self.dbg else 0):
                    A(f"v_and_b32_dpp v{a+k}, v{PK}, v{4+k} row_newbcast:{c_of_tile(i)} row_mask:0xf bank_mask:0xf")
                if last and i + D >= 16:
                    wait_tile(15 - i); self.nop(1)
                else:
                    wait_tile(D - 1); mode_wait(); load(i + D, 48)
                b = RB + 4 * i
                if "nov" not in self.dbg and "nomfma" not in self.dbg:
                    A(f"v_mfma_f32_16x16x32_bf16 v[{ACC}:{ACC+3}], v[{a}:{a+3}], v[{b}:{b+3}], v[{ACC}:{ACC+3}]")
        A("s_mov_b32 s9, 31")
        self.lab("L_vloop")
        v_iter(False)
        A(f"s_cmp_lg_u32 s9, {self.TRIG}"); A("s_cbranch_scc1 L_notrig")
        A(f"v_mov_b32 v{T0}, {L_TR}"); A(f"v_mov_b32 v{T1}, 1")
        A(f"ds_write_b32 v{T0}, v{T1}")
        self.lab("L_notrig")
        A("s_sub_u32 s9, s9, 1"); A("s_cmp_lg_u32 s9, 0"); A("s_cbranch_scc1 L_vloop")
        A(f"s_lshl_b32 s7, s3, 9"); A(f"s_add_u32 s7, s7, {L_OP}")
        A(f"v_lshlrev_b32 v{T0}, 5, v1"); A(f"v_lshlrev_b32 v{T1}, 4, v2"); A(f"v_add3_u32 v{T0}, v{T0}, v{T1}, s7")
        v_iter(True)
        A("s_mov_b32 exec_hi, 0")
        self.nop(8)
        A(f"ds_write_b128 v{T0}, v[{ACC}:{ACC+3}]")
        A("s_waitcnt lgkmcnt(0)")
        A("s_barrier")
        self.stamp(3)
        self.stamp_out(5)
        A("s_endpgm")

    def diag_mfmas(self, n, pk_of, wb, acc, waitbase, first_zero=True, hilo=False, sel=None, tb=None):
        A = self.A
        AA = (24, 28)
        def build(j):
            a = AA[j % 2]
            if not hilo:
                for k in range(4):
                    A(f"v_and_b32_dpp v{a+k}, v{pk_of(j)}, v{4+k} row_newbcast:{j%16} row_mask:0xf bank_mask:0xf")
            else:
                A(f"v_mov_b32_dpp v{tb}, v{pk_of(j)} row_newbcast:{j%16} row_mask:0xf bank_mask:0xf")
                for k in range(4):
                    A(f"v_perm_b32 v{a+k}, v{tb}, v{tb}, v{sel+k}")
        build(0)
        for j in range(n):
            if j + 1 < n: build(j + 1)
            else: self.nop(2)
            if waitbase is not None: A(f"s_waitcnt vmcnt({waitbase - j})")
            a = AA[j % 2]; b = wb + 4 * j
            c = "0" if (j == 0 and first_zero) else f"v[{acc}:{acc+3}]"
            A(f"v_mfma_f32_16x16x32_bf16 v[{acc}:{acc+3}], v[{a}:{a+3}], v[{b}:{b+3}], {c}")

    def check_flags(self, vt, va, sc):
        A = self.A
        l0 = self.newlab("L_fl"); l1 = self.newlab("L_fld")
        A(f"v_and_b32 v{va}, 31, v0"); A(f"v_lshlrev_b32 v{va}, 2, v{va}")
        A(f"s_mov_b32 s{sc}, 0")
        self.lab(l0)
        A(f"buffer_load_dword v{vt}, v{va}, s[60:63], 0 offen sc1")
        A("s_waitcnt vmcnt(0)")
        A(f"v_cmp_eq_u32 vcc, 0, v{vt}")
        A(f"s_add_u32 s{sc}, s{sc}, 1")
        A(f"s_cmp_ge_u32 s{sc}, {SPIN_MAX}"); A(f"s_cbranch_scc1 {l1}")
        A(f"s_cbranch_vccz {l1}")
        A("s_sleep 64")
        A(f"s_branch {l0}")
        self.lab(l1)

    def wloads(self, WB, VO, srd, step, imm=0, pace=0):
        A = self.A
        A("s_mov_b32 s8, 0")
        for j in range(32):
            o = f" offset:{imm}" if imm else ""
            A(f"buffer_load_dwordx4 v[{WB+4*j}:{WB+4*j+3}], v{VO}, s[{srd}:{srd+3}], s8 offen{o}{self.wpol}")
            if j < 31: A(f"s_add_u32 s8, s8, {step}")
            if pace: A(f"s_waitcnt vmcnt({pace-1})")

    def helper_wave(self):
        A = self.A
        WB = 128
        XV = 32
        XD = 44
        T0, T1, T2 = 16, 17, 18
        MEAN, RS = 19, 20
        VZ = 21
        VO = 22
        VL = 23
        VD = 46
        VM = 48
        ACC = 52
        SEL = 56
        ACC2 = 60
        G = 64
        A("s_sub_u32 s9, s3, 4")
        A("s_waitcnt lgkmcnt(0)")
        self.stamp(9)
        self.srd(44, 16, 1024)
        self.srd(48, 22, 512 * 8192 if "nowq" not in self.dbg else 0)
        A(f"v_lshlrev_b32 v{T0}, 4, v0")
        A(f"buffer_load_dwordx4 v[{XV}:{XV+3}], v{T0}, s[44:47], 0 offen")
        A(f"v_lshlrev_b32 v{VD}, 2, v1"); A(f"v_add_u32 v{VD}, v{VD}, v2"); A(f"v_lshlrev_b32 v{T1}, 1, v{VD}")
        A("s_lshl_b32 s7, s9, 8")
        A(f"buffer_load_ushort v{XD}, v{T1}, s[44:47], s7 offen")
        A(f"buffer_load_ushort v{XD+1}, v{T1}, s[44:47], s7 offen offset:128")
        A("s_lshl_b32 s7, s4, 8"); A("s_lshl_b32 s8, s9, 20"); A("s_add_u32 s7, s7, s8")
        A(f"v_lshlrev_b32 v{VO}, 13, v2"); A(f"v_lshlrev_b32 v{T2}, 4, v1"); A(f"v_add3_u32 v{VO}, v{VO}, v{T2}, s7")
        self.wloads(WB, VO, 48, 32768, pace=self.wqpace)
        self.srd(60, 38, 256)
        self.srd(64, 40, WS_BYTES)
        self.srd(52, 40, WS_BYTES)
        A("s_cmp_lt_u32 s2, 32"); A(f"s_cselect_b32 s54, {WS_BYTES}, 0")
        for r in range(4): A(f"v_mov_b32 v{VM+r}, -1")
        A("s_lshl_b32 s7, s2, 14"); A("s_lshl_b32 s8, s9, 12"); A("s_add_u32 s7, s7, s8"); A(f"s_add_u32 s7, s7, {W_PART}")
        for k in range(4):
            A(f"buffer_store_dwordx4 v[{VM}:{VM+3}], v{T0}, s[52:55], s7 offen offset:{1024*k} sc1")
        A("s_lshl_b32 s7, s2, 11"); A("s_lshl_b32 s8, s9, 10"); A("s_add_u32 s7, s7, s8"); A(f"s_add_u32 s7, s7, {W_PART + 256*2048 - 1024}")
        A(f"s_cmp_lt_u32 s2, {NFFN}"); A(f"s_cselect_b32 s7, s7, {WS_BYTES}")
        A("s_lshl_b32 s8, s2, 10"); A(f"s_add_u32 s8, s8, {W_PG}")
        A("s_cmp_eq_u32 s9, 3"); A(f"s_cselect_b32 s7, s8, s7")
        A("s_lshl_b32 s8, s2, 10"); A(f"s_add_u32 s8, s8, {W_ST}")
        A("s_cmp_eq_u32 s9, 0"); A("s_cselect_b32 s7, s8, s7")
        A(f"buffer_store_dwordx4 v[{VM}:{VM+3}], v{T0}, s[52:55], s7 offen sc1")
        NS = 5
        A(f"v_mov_b32 v{VZ}, 0")
        A(f"v_lshlrev_b32 v{VD}, 2, v{VD}")
        A(f"v_lshlrev_b32 v{VL}, 5, v1"); A(f"v_and_b32 v{T1}, 1, v2"); A(f"v_lshlrev_b32 v{T1}, 4, v{T1}"); A(f"v_add_u32 v{VL}, v{VL}, v{T1}")
        A(f"v_lshlrev_b32 v{T2}, 2, v0")
        A("s_mov_b32 exec_hi, 0")
        A(f"ds_write_b32 v{T2}, v{VZ} offset:{L_ST}")
        A("s_mov_b64 exec, -1")
        self.stamp(10)
        A(f"s_waitcnt vmcnt({34+NS})")
        self.stamp(11)
        U = XV + 4
        for k in range(4):
            A(f"v_lshlrev_b32 v{U+2*k}, 16, v{XV+k}")
            A(f"v_and_b32 v{U+2*k+1}, 0xffff0000, v{XV+k}")
        A(f"v_add_f32 v{MEAN}, v{U}, v{U+1}")
        for e in range(2, 8): A(f"v_add_f32 v{MEAN}, v{MEAN}, v{U+e}")
        self.bfly("v_add_f32", MEAN, T0)
        A(f"v_mul_f32 v{MEAN}, {f32(1.0/512)}, v{MEAN}")
        for e in range(8): A(f"v_sub_f32 v{U+e}, v{U+e}, v{MEAN}")
        A(f"v_mul_f32 v{RS}, v{U}, v{U}")
        for e in range(1, 8): A(f"v_fmac_f32 v{RS}, v{U+e}, v{U+e}")
        self.bfly("v_add_f32", RS, T0)
        A(f"v_mul_f32 v{RS}, {f32(1.0/512)}, v{RS}")
        self.rnd_bf16(MEAN, MEAN)
        self.rnd_bf16(RS, RS)
        A(f"v_add_f32 v{RS}, {f32(1e-5)}, v{RS}")
        self.rnd_bf16(RS, RS)
        A(f"v_sqrt_f32 v{RS}, v{RS}")
        self.nop(1)
        self.rnd_bf16(RS, RS)
        A(f"v_rcp_f32 v{RS}, v{RS}")
        def xn_pack(r):
            A(f"v_lshlrev_b32 v{r}, 16, v{r}")
            A(f"v_sub_f32 v{r}, v{r}, v{MEAN}")
            self.rnd_bf16(r, r)
            A(f"v_mul_f32 v{r}, v{r}, v{RS}")
            A(f"v_cvt_pk_bf16_f32 v{r}, v{r}, v{r}")
        self.stamp(12)
        A(f"s_waitcnt vmcnt({32+NS})")
        xn_pack(XD); xn_pack(XD + 1)
        self.nop(2)
        self.stamp(7)
        self.diag_mfmas(32, lambda j: XD + j // 16, WB, ACC, 31 + NS)
        A(f"s_lshl_b32 s7, s9, 9")
        A(f"v_add_u32 v{T0}, s7, v{VL}")
        A("s_mov_b32 exec_hi, 0")
        self.nop(6)
        A(f"ds_write_b128 v{T0}, v[{ACC}:{ACC+3}] offset:{L_QP}")
        A("s_mov_b32 exec_hi, -1")
        self.stamp(8)
        A("s_waitcnt vmcnt(0) lgkmcnt(0)")
        A("s_barrier")
        self.stamp(1)
        lskip = self.newlab("L_noflag")
        A("s_cmp_ge_u32 s2, 32"); A(f"s_cbranch_scc1 {lskip}")
        A("s_cmp_lg_u32 s9, 0"); A(f"s_cbranch_scc1 {lskip}")
        A(f"v_mov_b32 v{T1}, 1"); A("s_lshl_b32 s7, s2, 2")
        A("s_mov_b64 exec, 1")
        A(f"buffer_store_dword v{T1}, v{VZ}, s[60:63], s7 offen sc1")
        A("s_mov_b64 exec, -1")
        self.lab(lskip)
        lnf = self.newlab("L_noffn")
        A(f"s_sub_u32 s10, s2, {FFN_WG0}"); A(f"s_cmp_ge_u32 s10, {NFFN}"); A(f"s_cbranch_scc1 {lnf}")
        if "noffn" not in self.dbg: self.ffn(WB, XD, VZ, VO, VL, VD, ACC, ACC2, G)
        self.lab(lnf)
        self.srd(48, 24, 4096 * 1024 if "nowo" not in self.dbg else 0)
        A("s_lshl_b32 s7, s4, 17"); A("s_lshl_b32 s8, s9, 8"); A("s_add_u32 s7, s7, s8")
        A(f"v_lshlrev_b32 v{VO}, 10, v2"); A(f"v_lshlrev_b32 v{T2}, 4, v1"); A(f"v_add3_u32 v{VO}, v{VO}, v{T2}, s7")
        self.wloads(WB, VO, 48, 4096, pace=self.pace)
        A(f"v_mov_b32 v{T0}, 0x0100"); A(f"v_mov_b32 v{T1}, 0x0302")
        A("v_cmp_gt_u32 vcc, 8, v1"); self.nop(2)
        A(f"v_cndmask_b32 v{T0}, v{T1}, v{T0}, vcc")
        A(f"v_lshlrev_b32 v{T1}, 16, v{T0}"); A(f"v_or_b32 v{T0}, v{T0}, v{T1}")
        A(f"v_and_b32 v{T1}, 7, v1"); A(f"v_lshrrev_b32 v{T2}, 1, v{T1}")
        A(f"v_and_b32 v{T1}, 1, v1"); A(f"v_lshlrev_b32 v{T1}, 4, v{T1}")
        A(f"v_mov_b32 v{ACC2}, 0xffff"); A(f"v_lshlrev_b32 v{T1}, v{T1}, v{ACC2}")
        A(f"v_mov_b32 v{ACC2}, 0x0c0c0c0c")
        A(f"v_bfi_b32 v{T0}, v{T1}, v{T0}, v{ACC2}")
        for k in range(4):
            A(f"v_cmp_eq_u32 vcc, {k}, v{T2}"); self.nop(2)
            A(f"v_cndmask_b32 v{SEL+k}, v{ACC2}, v{T0}, vcc")
        VG = 47
        A(f"v_lshrrev_b32 v{VG}, 2, v0"); A(f"v_lshlrev_b32 v{VG}, 11, v{VG}")
        A(f"v_and_b32 v{T0}, 3, v0"); A(f"v_lshlrev_b32 v{T0}, 4, v{T0}"); A(f"v_add_u32 v{VG}, v{VG}, v{T0}")
        lns = self.newlab("L_nostat")
        A("s_cmp_lg_u32 s9, 0"); A(f"s_cbranch_scc1 {lns}")
        if "nostat" not in self.dbg: self.stats(VZ, ACC2)
        self.lab(lns)
        if self.ctl:
            lnc = self.newlab("L_noctl")
            A("s_cmp_lg_u32 s9, 2"); A(f"s_cbranch_scc1 {lnc}")
            self.controller(VZ, G)
            self.lab(lnc)
        BF, XF = 34, 35
        lnb = self.newlab("L_nob")
        A("s_cmp_lg_u32 s9, 1"); A(f"s_cbranch_scc1 {lnb}")
        A("s_cmp_ge_u32 s2, 32"); A(f"s_cbranch_scc1 {lnb}")
        if "noffn" not in self.dbg: self.bpart(BF, XF, ACC2, VZ, VG, G)
        self.lab(lnb)
        A("s_lshl_b32 s7, s2, 11"); A("s_lshl_b32 s8, s9, 9"); A("s_add_u32 s7, s7, s8"); A(f"s_add_u32 s7, s7, {W_PART}")
        A("s_lshl_b32 s12, s9, 17"); A("s_lshl_b32 s8, s2, 6"); A("s_add_u32 s12, s12, s8"); A(f"s_add_u32 s12, s12, {W_PART}")
        for k in range(1, 4): A(f"s_add_u32 s{12+k}, s12, {32768*k}")
        A("s_waitcnt vmcnt(0) lgkmcnt(0)")
        self.stamp(2)
        A("s_barrier")
        self.stamp(3)
        OP = 36
        FW = ACC2
        A(f"ds_read_b128 v[{FW}:{FW+3}], v{VZ} offset:{L_FW}")
        for w in range(4):
            A(f"ds_read_b32 v{OP+2*w}, v{VD} offset:{L_OP+512*w}")
            A(f"ds_read_b32 v{OP+2*w+1}, v{VD} offset:{L_OP+512*w+256}")
        A("s_waitcnt lgkmcnt(0)")
        for i in range(2):
            A(f"v_mul_f32 v{XD+i}, v{FW}, v{OP+i}")
            for w in range(1, 4): A(f"v_fmac_f32 v{XD+i}, v{FW+w}, v{OP+2*w+i}")
        for i in range(2):
            self.rnd_bf16(T1 + i, XD + i)
            A(f"v_sub_f32 v{T1+i}, v{XD+i}, v{T1+i}")
            A(f"v_cvt_pk_bf16_f32 v{XD+i}, v{XD+i}, v{T1+i}")
        self.nop(2)
        self.diag_mfmas(32, lambda j: XD + j // 16, WB, ACC, None, hilo=True, sel=SEL, tb=T0)
        self.nop(8)
        for r in range(4): A(f"v_mov_b32 v{ACC2+r}, v{ACC+r}")
        self.nop(1)
        for r in range(4): A(f"v_permlane32_swap_b32 v{ACC+r}, v{ACC2+r}")
        for r in range(4): A(f"v_add_f32 v{ACC+r}, v{ACC+r}, v{ACC2+r}")
        for r in range(4): A(f"v_min_u32 v{ACC+r}, -2, v{ACC+r}")
        A("s_mov_b32 exec_hi, 0")
        A(f"buffer_store_dwordx4 v[{ACC}:{ACC+3}], v{VL}, s[64:67], s7 offen sc1")
        A("s_mov_b32 exec_hi, -1")
        self.stamp(4)
        lfin = self.newlab("L_hend")
        A("s_cmp_ge_u32 s2, 32"); A(f"s_cbranch_scc1 {lfin}")
        lp = self.newlab("L_gat"); lpd = self.newlab("L_gatd")
        A("s_mov_b32 s10, 0")
        self.lab(lp)
        for k in range(4):
            A(f"buffer_load_dwordx4 v[{G+4*k}:{G+4*k+3}], v{VG}, s[64:67], s{12+k} offen sc1")
        A("s_waitcnt vmcnt(0)")
        A(f"v_max3_u32 v{T1}, v{G}, v{G+1}, v{G+2}")
        for k in range(3, 15, 2): A(f"v_max3_u32 v{T1}, v{T1}, v{G+k}, v{G+k+1}")
        A(f"v_max_u32 v{T1}, v{T1}, v{G+15}")
        A(f"v_cmp_eq_u32 vcc, -1, v{T1}")
        A("s_add_u32 s10, s10, 1")
        A(f"s_cmp_ge_u32 s10, {SPIN_MAX}"); A(f"s_cbranch_scc1 {lpd}")
        A(f"s_cbranch_vccnz {lp}")
        self.lab(lpd)
        self.stamp(5)
        for r in range(4):
            A(f"v_add_f32 v{G+r}, v{G+r}, v{G+4+r}")
            A(f"v_add_f32 v{G+8+r}, v{G+8+r}, v{G+12+r}")
        for r in range(4): A(f"v_add_f32 v{G+r}, v{G+r}, v{G+8+r}")
        self.quad_col_reduce(G, G + 4)
        A(f"s_lshl_b32 s7, s9, 6"); A(f"v_lshlrev_b32 v{T0}, 4, v0"); A(f"v_add_u32 v{T0}, s7, v{T0}")
        A("s_mov_b64 exec, 0xf")
        A(f"ds_write_b128 v{T0}, v[{G}:{G+3}] offset:{L_FIN}")
        A("s_mov_b64 exec, -1")
        A("s_waitcnt lgkmcnt(0)")
        A("s_barrier")
        A("s_cmp_lg_u32 s9, 1"); A(f"s_cbranch_scc1 {lfin}")
        A(f"v_lshlrev_b32 v{T0}, 2, v1")
        for h in range(4): A(f"ds_read_b32 v{G+h}, v{T0} offset:{L_FIN+64*h}")
        self.srd(44, 36, 1024)
        A("s_lshl_b32 s7, s2, 5")
        A(f"v_lshlrev_b32 v{T0}, 1, v1")
        A("s_waitcnt lgkmcnt(0)")
        A(f"v_add_f32 v{G}, v{G}, v{G+1}"); A(f"v_add_f32 v{G+2}, v{G+2}, v{G+3}"); A(f"v_add_f32 v{G}, v{G}, v{G+2}")
        self.rnd_bf16(G, G)
        A(f"v_add_f32 v{G}, v{XF}, v{G}")
        self.rnd_bf16(G, G)
        A(f"v_add_f32 v{G}, v{G}, v{BF}")
        A(f"v_cvt_pk_bf16_f32 v{G}, v{G}, v{G}")
        A("s_mov_b64 exec, 0xffff")
        A(f"buffer_store_short v{G}, v{T0}, s[44:47], s7 offen")
        self.stamp(6)
        self.lab(lfin)
        self.stamp_out(13)

    def quad_col_reduce(self, R, T):
        A = self.A
        for ctl in ("row_ror:4", "row_ror:8"):
            self.nop(2)
            for r in range(4):
                A(f"v_add_f32_dpp v{R+r}, v{R+r}, v{R+r} {ctl} row_mask:0xf bank_mask:0xf")
        for s in ("v_permlane16_swap_b32", "v_permlane32_swap_b32"):
            for r in range(4): A(f"v_mov_b32 v{T+r}, v{R+r}")
            self.nop(1)
            for r in range(4): A(f"{s} v{R+r}, v{T+r}")
            for r in range(4): A(f"v_add_f32 v{R+r}, v{R+r}, v{T+r}")

    def stats(self, VZ, S4):
        A = self.A
        T0, T1, T2 = 16, 17, 18
        A(f"v_and_b32 v{T0}, 3, v0"); A(f"v_lshlrev_b32 v{T0}, 4, v{T0}")
        l0 = self.newlab("L_st"); l1 = self.newlab("L_std")
        A("s_mov_b32 s10, 0")
        self.lab(l0)
        A(f"ds_read_b128 v[{S4}:{S4+3}], v{T0} offset:{L_ST}")
        A("s_waitcnt lgkmcnt(0)")
        A(f"v_cmp_ne_u32 vcc, 1, v{S4+2}")
        A("s_add_u32 s10, s10, 1")
        A(f"s_cmp_ge_u32 s10, {SPIN_MAX*20}"); A(f"s_cbranch_scc1 {l1}")
        A(f"s_cbranch_vccz {l1}")
        A("s_sleep 32")
        A(f"s_branch {l0}")
        self.lab(l1)
        self.check_flags(T1, T2, 10)
        A(f"v_min_u32 v{S4}, -2, v{S4}"); A(f"v_min_u32 v{S4+1}, -2, v{S4+1}")
        A("s_lshl_b32 s7, s4, 10"); A("s_lshl_b32 s8, s5, 5"); A("s_add_u32 s8, s8, s7")
        A(f"v_lshlrev_b32 v{T0}, 3, v0")
        A("s_mov_b64 exec, 0xf")
        A(f"buffer_store_dwordx2 v[{S4}:{S4+1}], v{T0}, s[64:67], s8 offen offset:{W_ST} sc1")
        A("s_mov_b64 exec, -1")
        self.wait_trigger(VZ, T1, 10)
        A(f"v_and_b32 v{T0}, 31, v0"); A(f"v_lshlrev_b32 v{T0}, 3, v{T0}")
        l0 = self.newlab("L_sg"); l1 = self.newlab("L_sgd")
        A("s_mov_b32 s10, 0")
        self.lab(l0)
        A(f"buffer_load_dwordx2 v[{S4}:{S4+1}], v{T0}, s[64:67], s7 offen offset:{W_ST} sc1")
        A("s_waitcnt vmcnt(0)")
        A(f"v_max_u32 v{T1}, v{S4}, v{S4+1}")
        A(f"v_cmp_eq_u32 vcc, -1, v{T1}")
        A("s_add_u32 s10, s10, 1")
        A(f"s_cmp_ge_u32 s10, {SPIN_MAX}"); A(f"s_cbranch_scc1 {l1}")
        A(f"s_cbranch_vccz {l1}")
        A("s_sleep 64")
        A(f"s_branch {l0}")
        self.lab(l1)
        A(f"v_mov_b32 v{S4+2}, v{S4}")
        self.bfly("v_max_f32", S4 + 2, T1, full=False)
        A(f"v_sub_f32 v{S4}, v{S4}, v{S4+2}")
        A(f"v_mul_f32 v{S4}, {f32(LOG2E)}, v{S4}")
        A(f"v_exp_f32 v{S4}, v{S4}")
        self.nop(1)
        A(f"v_mul_f32 v{S4+1}, v{S4+1}, v{S4}")
        self.bfly("v_add_f32", S4 + 1, T1, full=False)
        A(f"v_rcp_f32 v{S4+1}, v{S4+1}")
        self.nop(1)
        A(f"v_mul_f32 v{S4}, v{S4}, v{S4+1}")
        A(f"v_and_b32 v{T0}, 3, v0"); A(f"v_lshlrev_b32 v{T0}, 2, v{T0}")
        A("s_lshl_b32 s8, s5, 2")
        A("s_lshl_b64 s[12:13], 15, s8")
        A("s_mov_b64 exec, s[12:13]")
        A(f"ds_write_b32 v{T0}, v{S4} offset:{L_FW}")
        A("s_mov_b64 exec, -1")

    def controller(self, VZ, G):
        A = self.A
        T0, T1, T2 = 16, 17, 18
        VN, VO_ = G, G + 1
        A(f"v_mul_u32_u24 v{VN}, 15, v1"); A(f"v_add_u32 v{VN}, 1, v{VN}"); A(f"v_add_u32 v{VN}, s2, v{VN}")
        A(f"v_and_b32 v{VN}, 255, v{VN}"); A(f"v_lshlrev_b32 v{VN}, 7, v{VN}")
        A("s_lshl_b32 s7, s2, 7"); A(f"v_mov_b32 v{VO_}, s7")
        A(f"s_mov_b32 s11, {W_PG}")
        ms = self.miles + [64]
        first = True
        for k in range(len(self.miles)):
            m, nx = ms[k], ms[k + 1]
            l0 = self.newlab("L_ms"); l1 = self.newlab("L_msd"); l2 = self.newlab("L_msn")
            A("s_mov_b32 s10, 0")
            self.lab(l0)
            A(f"ds_read_b32 v{T0}, v{VZ} offset:{L_PG}")
            A("s_waitcnt lgkmcnt(0)")
            A(f"v_readfirstlane_b32 s8, v{T0}")
            A("s_add_u32 s10, s10, 1")
            A(f"s_cmp_ge_u32 s10, {SPIN_MAX*20}"); A(f"s_cbranch_scc1 {l2}")
            A(f"s_cmp_ge_u32 s8, {m}"); A(f"s_cbranch_scc1 {l1}")
            A("s_sleep 12")
            A(f"s_branch {l0}")
            self.lab(l1)
            if first:
                self.check_flags(T1, T2, 10); first = False
            if nx < 64:
                A(f"s_cmp_ge_u32 s8, {nx}"); A(f"s_cbranch_scc1 {l2}")
            A(f"v_mov_b32 v{T0}, {m}")
            A("s_mov_b64 exec, 1")
            A(f"buffer_store_dword v{T0}, v{VO_}, s[64:67], s11 offen sc1")
            A("s_mov_b64 exec, 0xffff")
            A(f"buffer_load_dword v{T1}, v{VN}, s[64:67], s11 offen sc1")
            A("s_waitcnt vmcnt(0)")
            A(f"v_cmp_le_i32 vcc, {m}, v{T1}")
            A("s_mov_b64 exec, -1")
            self.nop(4)
            A("s_bcnt1_i32_b64 s8, vcc")
            if self.c0:
                A(f"s_max_u32 s8, s8, {self.c0}"); A(f"s_sub_u32 s8, s8, {self.c0}")
            A(f"s_mul_i32 s8, s8, {(nx - m) * self.gain}")
            A("s_add_u32 s8, s8, 128"); A("s_lshr_b32 s8, s8, 8")
            A(f"s_min_u32 s8, s8, {nx - m}")
            A(f"s_add_u32 s8, s8, {m + 2}")
            A(f"v_mov_b32 v{T0}, s8")
            A(f"ds_write_b32 v{VZ}, v{T0} offset:{L_CT}")
            self.lab(l2)
        A("s_mov_b64 exec, -1")

    def bpart(self, BF, XF, S4, VZ, VG, G):
        A = self.A
        T0, T1, T2 = 16, 17, 18
        self.srd(52, 34, 1024)
        A("s_lshl_b32 s7, s2, 5")
        A(f"v_lshlrev_b32 v{T0}, 1, v1")
        A(f"buffer_load_ushort v{XF}, v{T0}, s[44:47], s7 offen")
        A(f"buffer_load_ushort v{S4}, v{T0}, s[52:55], s7 offen")
        self.wait_trigger(VZ, T1, 10)
        self.check_flags(T1, T2, 10)
        A(f"s_lshl_b32 s7, s2, 6"); A(f"s_add_u32 s7, s7, {W_PART + 256*2048}")
        for r in range(4): A(f"v_mov_b32 v{G+r}, 0")
        A(f"s_mov_b32 exec_hi, {(1 << (NFFN*4 - 32)) - 1}")
        lp = self.newlab("L_bg"); lpd = self.newlab("L_bgd")
        A("s_mov_b32 s10, 0")
        self.lab(lp)
        A(f"buffer_load_dwordx4 v[{G}:{G+3}], v{VG}, s[64:67], s7 offen sc1")
        A("s_waitcnt vmcnt(0)")
        A(f"v_max3_u32 v{T1}, v{G}, v{G+1}, v{G+2}")
        A(f"v_max_u32 v{T1}, v{T1}, v{G+3}")
        A(f"v_cmp_eq_u32 vcc, -1, v{T1}")
        A("s_add_u32 s10, s10, 1")
        A(f"s_cmp_ge_u32 s10, {SPIN_MAX}"); A(f"s_cbranch_scc1 {lpd}")
        A(f"s_cbranch_vccz {lpd}")
        A("s_sleep 64")
        A(f"s_branch {lp}")
        self.lab(lpd)
        A("s_mov_b32 exec_hi, -1")
        self.quad_col_reduce(G, G + 4)
        A(f"v_lshlrev_b32 v{T0}, 4, v0")
        A("s_mov_b64 exec, 0xf")
        A(f"ds_write_b128 v{T0}, v[{G}:{G+3}] offset:{L_FIN+256}")
        A("s_mov_b64 exec, -1")
        A(f"v_lshlrev_b32 v{T0}, 2, v1")
        A("s_waitcnt lgkmcnt(0)")
        A(f"ds_read_b32 v{BF}, v{T0} offset:{L_FIN+256}")
        A(f"v_lshlrev_b32 v{XF}, 16, v{XF}")
        A(f"v_lshlrev_b32 v{S4}, 16, v{S4}")
        A("s_waitcnt lgkmcnt(0)")
        self.rnd_bf16(BF, BF)
        A(f"v_add_f32 v{BF}, v{BF}, v{S4}")
        self.rnd_bf16(BF, BF)

    def ffn(self, WB, XD, VZ, VO, VL, VD, ACC, ACC2, G):
        A = self.A
        T0, T1, T2 = 16, 17, 18
        pace = self.pace
        self.srd(48, 28, 512 * 3584 if "now12" not in self.dbg else 0)
        self.srd(52, 30, 3584)
        self.srd(56, 32, 1792 * 1024 if "now12" not in self.dbg else 0)
        A("s_lshl_b32 s7, s10, 8")
        A(f"v_lshrrev_b32 v{T0}, 1, v{VD}")
        A(f"buffer_load_ushort v{G+8}, v{T0}, s[52:55], s7 offen")
        A(f"buffer_load_ushort v{G+9}, v{T0}, s[52:55], s7 offen offset:128")
        A(f"s_mul_i32 s8, s9, {128*3584}"); A("s_add_u32 s7, s7, s8")
        A(f"v_mul_u32_u24 v{VO}, 3584, v2"); A(f"v_lshlrev_b32 v{T2}, 4, v1"); A(f"v_add3_u32 v{VO}, v{VO}, v{T2}, s7")
        self.wloads(WB, VO, 48, 14336, pace=pace)
        self.diag_mfmas(32, lambda j: XD + j // 16, WB, ACC, 31)
        A(f"s_lshl_b32 s7, s9, 9")
        A(f"v_add_u32 v{T0}, s7, v{VL}")
        A(f"v_mov_b32 v{T1}, 1")
        A("s_mov_b32 exec_hi, 0")
        self.nop(6)
        A(f"ds_write_b128 v{T0}, v[{ACC}:{ACC+3}] offset:{L_FS}")
        A("s_mov_b64 exec, 1")
        A(f"ds_add_u32 v{VZ}, v{T1} offset:{L_FC}")
        A("s_mov_b64 exec, -1")
        A("s_lshl_b32 s7, s10, 17"); A("s_lshl_b32 s8, s9, 8"); A("s_add_u32 s7, s7, s8")
        A(f"v_lshlrev_b32 v{VO}, 10, v2"); A(f"v_lshlrev_b32 v{T2}, 4, v1"); A(f"v_add3_u32 v{VO}, v{VO}, v{T2}, s7")
        self.wloads(WB, VO, 56, 4096, pace=pace)
        l0 = self.newlab("L_fc"); l1 = self.newlab("L_fcd")
        A("s_mov_b32 s11, 0")
        self.lab(l0)
        A(f"ds_read_b32 v{T1}, v{VZ} offset:{L_FC}")
        A("s_waitcnt lgkmcnt(0)")
        A(f"v_cmp_ne_u32 vcc, 4, v{T1}")
        A("s_add_u32 s11, s11, 1")
        A(f"s_cmp_ge_u32 s11, {SPIN_MAX*20}"); A(f"s_cbranch_scc1 {l1}")
        A(f"s_cbranch_vccz {l1}")
        A("s_sleep 8")
        A(f"s_branch {l0}")
        self.lab(l1)
        for w in range(4):
            A(f"ds_read_b32 v{G+2*w}, v{VD} offset:{L_FS+512*w}")
            A(f"ds_read_b32 v{G+2*w+1}, v{VD} offset:{L_FS+512*w+256}")
        A("s_waitcnt lgkmcnt(0)")
        HP = G + 10
        for i in range(2):
            A(f"v_add_f32 v{G+i}, v{G+i}, v{G+2+i}"); A(f"v_add_f32 v{G+4+i}, v{G+4+i}, v{G+6+i}")
            A(f"v_add_f32 v{G+i}, v{G+i}, v{G+4+i}")
            self.rnd_bf16(G + i, G + i)
            A(f"v_lshlrev_b32 v{G+8+i}, 16, v{G+8+i}")
            A(f"v_add_f32 v{G+i}, v{G+i}, v{G+8+i}")
            self.rnd_bf16(G + i, G + i)
            A(f"v_cmp_lt_f32 vcc, 0, v{G+i}"); self.nop(2)
            A(f"v_cndmask_b32 v{G+i}, 0, v{G+i}, vcc")
            A(f"v_mul_f32 v{G+i}, v{G+i}, v{G+i}")
            A(f"v_cvt_pk_bf16_f32 v{HP+i}, v{G+i}, v{G+i}")
        self.check_flags(T1, T2, 11)
        self.diag_mfmas(32, lambda j: HP + j // 16, WB, ACC, None)
        self.nop(8)
        for r in range(4): A(f"v_min_u32 v{ACC2+r}, -2, v{ACC+r}")
        A("s_lshl_b32 s7, s10, 11"); A("s_lshl_b32 s8, s9, 9"); A("s_add_u32 s7, s7, s8"); A(f"s_add_u32 s7, s7, {W_PART + 256*2048}")
        A("s_mov_b32 exec_hi, 0")
        A(f"buffer_store_dwordx4 v[{ACC2}:{ACC2+3}], v{VL}, s[64:67], s7 offen sc1")
        A("s_mov_b32 exec_hi, -1")
        self.nop(2)

if __name__ == "__main__":
    import argparse
    ap = argparse.ArgumentParser()
    ap.add_argument("out"); ap.add_argument("--D", type=int, default=6); ap.add_argument("--mode", default="slow")
    ap.add_argument("--stamps", action="store_true"); ap.add_argument("--map", default="A"); ap.add_argument("--dbg", default="")
    a = ap.parse_args()
    open(a.out, "w").write(Gen(a.D, a.mode, a.stamps, a.map, a.dbg).build())
```

```python
import sys, struct
KN = "parallel_sum__mha_block_cached__dense_activation_squared_relu__decode"

def f32(x):
    return "0x%08x" % struct.unpack("<I", struct.pack("<f", x))[0]

HEADER = """; Kernarg layout for this problem (104 bytes, ptrs only, base s[0:1]):
;   offset   0: d_in[0] A_x  shape=(1, 1, 512) dtype=bfloat16 strides=(1024, 1024, 2) contiguous=True
;   offset   8: d_in[1] A_k_cache  shape=(1, 32, 65536, 128) dtype=bfloat16 strides=(536870912, 16777216, 256, 2) contiguous=True
;   offset  16: d_in[2] A_v_cache  shape=(1, 32, 65536, 128) dtype=bfloat16 strides=(536870912, 16777216, 256, 2) contiguous=True
;   offset  24: d_in[3] A_wq  shape=(512, 4096) dtype=bfloat16 strides=(8192, 2) contiguous=True
;   offset  32: d_in[4] A_wo  shape=(4096, 512) dtype=bfloat16 strides=(1024, 2) contiguous=True
;   offset  40: d_in[5] B_x  shape=(1, 1, 512) dtype=bfloat16 strides=(1024, 1024, 2) contiguous=True
;   offset  48: d_in[6] B_w1  shape=(512, 1792) dtype=bfloat16 strides=(3584, 2) contiguous=True
;   offset  56: d_in[7] B_b1  shape=(1792,) dtype=bfloat16 strides=(2,) contiguous=True
;   offset  64: d_in[8] B_w2  shape=(1792, 512) dtype=bfloat16 strides=(1024, 2) contiguous=True
;   offset  72: d_in[9] B_b2  shape=(512,) dtype=bfloat16 strides=(2,) contiguous=True
;   offset  80: d_out     shape=(1, 1, 512) dtype=bfloat16 (2 bytes/elem)
;   offset  96: d_ws      2147483648 bytes workspace
"""

L_QP   = 0
L_OP   = 2048
L_ST   = 4096
L_FW   = 4160
L_TR   = 4176
L_FIN  = 4224
L_FC   = 4180
L_CT   = 4184
L_PG   = 4192
L_FS   = 4608
L_SC   = 8192
LDS_BYTES = L_SC + 4 * 8192

W_ST   = 0
W_PG   = 0x8000
W_PART = 0x10000
WS_BYTES = W_PART + 272 * 2048
NFFN = 14
FFN_WG0 = 32
SPIN_MAX = 2000000

LOG2E = 1.4426950408889634
SCALE = 128 ** -0.5

def c_of_tile(i):
    for c in range(16):
        t = (c >> 3) | (((c >> 2) & 1) << 1) | ((c & 1) << 2) | (((c >> 1) & 1) << 3)
        if t == i:
            return c

class Gen:
    def __init__(self, D=6, mode="slow", stamps=False, wgmap="A", dbg=""):
        self.dbg = dbg.split(",")
        self.wpol = " nt" if "wnt" in self.dbg else ""
        self.NPRE = 48
        self.TRIG = 8
        self.pace = 0
        self.wqpace = 0
        self.rot = None
        self.ppd = 8
        self.nsp = 1; self.dend = D
        self.wopace = None; self.wodelay = 0; self.wopol = None
        self.lo = 1
        self.ctl = "ctl" in self.dbg
        self.c0 = 0; self.gain = 16
        self.miles = [16, 32, 44, 54, 60]
        self.fk = 4 if mode == "fast" else 0
        self.fv = self.fk
        for o in self.dbg:
            if o.startswith("pre"): self.NPRE = int(o[3:])
            if o.startswith("trig"): self.TRIG = int(o[4:])
            if o.startswith("pace"): self.pace = int(o[4:])
            if o.startswith("lo"): self.lo = int(o[2:])
            if o.startswith("c0"): self.c0 = int(o[2:])
            if o.startswith("gain"): self.gain = int(o[4:])
            if o.startswith("ms"): self.miles = [int(x) for x in o[2:].split("-")]
            if o.startswith("wop"): self.wopace = int(o[3:])
            if o.startswith("wod") and o != "wodef": self.wodelay = int(o[3:])
            if o == "wodef": self.wopol = ""
            if o.startswith("nsp"): self.nsp = int(o[3:])
            if o.startswith("dend"): self.dend = int(o[4:])
            if o.startswith("rr"): self.rot = (0x9E3779B1, int(o[2:]) * 1024 - 1)
            if o.startswith("sk"): self.rot = (int(o[2:]) * 1024, 0xffffffff)
            if o.startswith("ppd"): self.ppd = int(o[3:])
            if o.startswith("wqp"): self.wqpace = int(o[3:])
            if o.startswith("fk"): self.fk = int(o[2:])
            if o.startswith("fv"): self.fv = int(o[2:])
        self.wgmap = wgmap
        self.L = []
        self.D = D
        self.mode = mode
        self.stamps = stamps
        self.nlab = 0
        if self.wopace is None: self.wopace = self.pace
    def A(self, s):
        self.L.append("  " + s)
    def lab(self, name):
        self.L.append(name + ":")
    def newlab(self, p="L"):
        self.nlab += 1
        return f"{p}_{self.nlab}"
    def nop(self, n):
        while n > 0:
            k = min(n, 16)
            self.A(f"s_nop {k-1}")
            n -= k
    def rnd_bf16(self, d, s):
        self.A(f"v_cvt_pk_bf16_f32 v{d}, v{s}, v{s}")
        self.A(f"v_and_b32 v{d}, 0xffff0000, v{d}")
    def bfly(self, op, v, t, full=True):
        for ctl in ("quad_perm:[1,0,3,2]", "quad_perm:[2,3,0,1]", "row_half_mirror", "row_mirror"):
            self.nop(2)
            self.A(f"{op}_dpp v{v}, v{v}, v{v} {ctl} row_mask:0xf bank_mask:0xf")
        sw = ["v_permlane16_swap_b32"] + (["v_permlane32_swap_b32"] if full else [])
        for s in sw:
            self.A(f"v_mov_b32 v{t}, v{v}")
            self.nop(2)
            self.A(f"{s} v{v}, v{t}")
            self.nop(1)
            self.A(f"{op} v{v}, v{v}, v{t}")
    def srd(self, d, base, nbytes):
        self.A(f"s_mov_b32 s{d}, s{base}")
        self.A(f"s_and_b32 s{d+1}, s{base+1}, 0xffff")
        self.A(f"s_mov_b32 s{d+2}, {nbytes}")
        self.A(f"s_mov_b32 s{d+3}, 0x20000")
    def poll_counter(self, voff, off, target, vt, st, sc):
        l0 = self.newlab("L_poll"); l1 = self.newlab("L_polld")
        self.A(f"s_mov_b32 s{sc}, 0")
        self.lab(l0)
        self.A(f"buffer_load_dword v{vt}, v{voff}, s[60:63], 0 offen offset:{off} sc1")
        self.A("s_waitcnt vmcnt(0)")
        self.A(f"v_readfirstlane_b32 s{st}, v{vt}")
        self.A(f"s_add_u32 s{sc}, s{sc}, 1")
        self.A(f"s_cmp_ge_u32 s{st}, {target}")
        self.A(f"s_cbranch_scc1 {l1}")
        self.A(f"s_cmp_ge_u32 s{sc}, {SPIN_MAX}")
        self.A(f"s_cbranch_scc1 {l1}")
        self.A("s_sleep 64")
        self.A(f"s_branch {l0}")
        self.lab(l1)
    def wait_trigger(self, vz, vt, sc):
        l0 = self.newlab("L_tr"); l1 = self.newlab("L_trd")
        self.A(f"s_mov_b32 s{sc}, 0")
        self.lab(l0)
        self.A(f"ds_read_b32 v{vt}, v{vz} offset:{L_TR}")
        self.A("s_waitcnt lgkmcnt(0)")
        self.A(f"v_cmp_ne_u32 vcc, 1, v{vt}")
        self.A(f"s_add_u32 s{sc}, s{sc}, 1")
        self.A(f"s_cmp_ge_u32 s{sc}, {SPIN_MAX*20}"); self.A(f"s_cbranch_scc1 {l1}")
        self.A(f"s_cbranch_vccz {l1}")
        self.A("s_sleep 32")
        self.A(f"s_branch {l0}")
        self.lab(l1)
    def stamp(self, idx):
        if self.stamps:
            self.A(f"s_memrealtime s[{70+2*idx}:{71+2*idx}]")
    def stamp_out(self, n):
        if not self.stamps: return
        self.A("s_waitcnt lgkmcnt(0)")
        self.A("s_mov_b64 exec, -1")
        self.A("s_lshl_b32 s4, s2, 3"); self.A("s_add_u32 s4, s4, s3"); self.A("s_lshl_b32 s4, s4, 7"); self.A("s_add_u32 s4, s4, 0x100000")
        self.A("v_mov_b32 v1, s4")
        self.A("s_getreg_b32 s5, hwreg(HW_REG_XCC_ID)")
        for i in range(n):
            self.A(f"v_mov_b32 v2, s{70+2*i}"); self.A(f"v_mov_b32 v3, s{71+2*i}")
            self.A(f"global_store_dwordx2 v1, v[2:3], s[40:41] offset:{8*i}")
            self.nop(2)
        self.A("v_mov_b32 v2, s5")
        self.A(f"global_store_dword v1, v2, s[40:41] offset:120")

    def build(self):
        A = self.A; D = self.D
        self.L.append(HEADER.rstrip("\n"))
        self.L.append(f"; @launch grid=(256,1,1) block=(512,1,1) lds={LDS_BYTES}")
        self.L.append('.amdgcn_target "amdgcn-amd-amdhsa--gfx950"')
        self.L.append(".text"); self.L.append(f".globl {KN}_kernel"); self.L.append(".p2align 8")
        self.L.append(f".type {KN}_kernel,@function"); self.L.append(f"{KN}_kernel:")
        A("s_cmp_ge_u32 s2, 256"); A("s_cbranch_scc1 L_end")
        A("s_load_dwordx16 s[16:31], s[0:1], 0")
        A("s_load_dwordx8 s[32:39], s[0:1], 64")
        A("s_load_dwordx2 s[40:41], s[0:1], 96")
        self.stamp(0)
        A("v_lshrrev_b32 v1, 6, v0")
        A("v_and_b32 v0, 63, v0")
        A("v_readfirstlane_b32 s3, v1")
        A("v_and_b32 v1, 15, v0")
        A("v_lshrrev_b32 v2, 4, v0")
        if self.wgmap == "B":
            A("s_and_b32 s4, s2, 7"); A("s_lshl_b32 s4, s4, 2")
            A("s_lshr_b32 s5, s2, 3"); A("s_and_b32 s6, s5, 3"); A("s_add_u32 s4, s4, s6")
            A("s_lshr_b32 s5, s2, 5")
        else:
            A("s_lshr_b32 s4, s2, 3")
            A("s_and_b32 s5, s2, 7")
        A("v_lshrrev_b32 v3, 1, v1")
        A("v_and_b32 v8, 1, v1")
        A("v_mov_b32 v9, 0xffff")
        A("v_lshlrev_b32 v8, 4, v8")
        A("v_lshlrev_b32 v9, v8, v9")
        for k in range(4):
            A(f"v_cmp_eq_u32 vcc, {k}, v3")
            self.nop(2)
            A(f"v_cndmask_b32 v{4+k}, 0, v9, vcc")
        A("s_cmp_ge_u32 s3, 4")
        A("s_cbranch_scc1 L_helper")
        self.stream_wave()
        self.lab("L_helper")
        self.helper_wave()
        self.lab("L_end"); A("s_endpgm")
        self.L.append('.section .rodata,"a"'); self.L.append(".p2align 6"); self.L.append(f".amdhsa_kernel {KN}_kernel")
        A(".amdhsa_next_free_vgpr 256"); A(".amdhsa_next_free_sgpr 100"); A(".amdhsa_accum_offset 256")
        A(".amdhsa_group_segment_fixed_size 0"); A(".amdhsa_kernarg_size 104"); A(".amdhsa_user_sgpr_count 2")
        A(".amdhsa_user_sgpr_kernarg_segment_ptr 1"); A(".amdhsa_system_sgpr_workgroup_id_x 1")
        self.L.append(".end_amdhsa_kernel")
        return "\n".join(self.L) + "\n"

    def stream_wave(self):
        A = self.A; D = self.D
        VOFF = 10; Q = 12
        RB = 64
        P = 32
        T0, T1 = 16, 17
        M, LS = 18, 19
        SCA = 20
        PK = 21; SN = 22
        AA = (24, 28)
        ACC = 48
        TQ = 52
        if "noprio" not in self.dbg: A("s_setprio 2")
        A("s_waitcnt lgkmcnt(0)")
        A("s_lshl_b32 s6, s4, 24"); A("s_lshl_b32 s7, s5, 21"); A("s_add_u32 s6, s6, s7")
        for sd, sb in ((44, 18), (48, 20)):
            A(f"s_add_u32 s{sd}, s{sb}, s6"); A(f"s_addc_u32 s{sd+1}, s{sb+1}, 0"); A(f"s_and_b32 s{sd+1}, s{sd+1}, 0xffff")
            A(f"s_mov_b32 s{sd+2}, 0x200000"); A(f"s_mov_b32 s{sd+3}, 0x20000")
        A("s_lshl_b32 s7, s3, 10")
        A(f"v_lshlrev_b32 v{VOFF}, 4, v0"); A(f"v_add_u32 v{VOFF}, s7, v{VOFF}")
        if self.rot:
            mul, mask = self.rot
            A(f"s_mul_i32 s52, s2, {mul}"); A(f"s_and_b32 s52, s52, {mask & 0x1ff000}")
            A("s_mov_b32 s8, s52")
        else:
            A("s_mov_b32 s8, 0")
        NPRE = self.NPRE
        def slot_reg(k):
            if k < 16 or k >= NPRE: return RB + 4 * (k % 16)
            return 128 + 4 * (k - 16)
        def load(k, srd, reg=None):
            b = RB + 4 * (k % 16) if reg is None else reg
            A(f"buffer_load_dwordx4 v[{b}:{b+3}], v{VOFF}, s[{srd}:{srd+3}], s8 offen nt")
            A("s_add_u32 s8, s8, 4096")
            if self.rot: A("s_and_b32 s8, s8, 0x1fffff")
        DW = D - self.lo if self.mode == "slow" else D
        for i in range(min(NPRE, DW)): load(i, 44, slot_reg(i))
        A("s_mov_b32 s10, 0xaaaaaaaa"); A("s_mov_b32 s11, 0xaaaaaaaa")
        A("s_mov_b32 s12, 0xcccccccc"); A("s_mov_b32 s13, 0xcccccccc")
        A(f"s_mov_b32 s14, {f32(SCALE)}"); A(f"s_mov_b32 s15, {f32(LOG2E)}")
        A(f"v_mov_b32 v{M}, 0xff7fffff"); A(f"v_mov_b32 v{LS}, 0")
        A(f"s_lshl_b32 s7, s3, 13"); A(f"s_add_u32 s7, s7, {L_SC}")
        A(f"v_lshlrev_b32 v{SCA}, 2, v0"); A(f"v_add_u32 v{SCA}, s7, v{SCA}")
        for r in range(4): A(f"v_mov_b32 v{ACC+r}, 0")
        A(f"v_lshlrev_b32 v{T0}, 5, v1")
        def set_mode(nfast):
            A(f"s_cmp_lt_u32 s3, {nfast}"); A("s_cselect_b64 vcc, -1, 0")
        set_mode(self.fk)
        for i in range(DW, NPRE):
            A(f"s_waitcnt vmcnt({DW-1})")
            load(i, 44, slot_reg(i))
        self.stamp(4)
        A("s_barrier")
        self.stamp(1)
        tq = list(range(P, P + 16)) + list(range(TQ, TQ + 12)) + list(range(AA[0], AA[0] + 4))
        for h in range(4):
            for hf in range(2):
                r = tq[8 * h + 4 * hf]
                A(f"ds_read_b128 v[{r}:{r+3}], v{T0} offset:{L_QP+512*h+16*hf}")
        A("s_waitcnt lgkmcnt(0)")
        for e in range(8):
            A(f"v_add_f32 v{tq[e]}, v{tq[e]}, v{tq[8+e]}")
            A(f"v_add_f32 v{tq[16+e]}, v{tq[16+e]}, v{tq[24+e]}")
        for e in range(8):
            A(f"v_add_f32 v{tq[e]}, v{tq[e]}, v{tq[16+e]}")
        for k in range(4):
            A(f"v_cvt_pk_bf16_f32 v{Q+k}, v{tq[2*k]}, v{tq[2*k+1]}")
        def wait_tile(n):
            A(f"s_waitcnt vmcnt({n})")
        def mode_wait():
            l = self.newlab("L_m")
            A(f"s_cbranch_vccnz {l}")
            A(f"s_waitcnt vmcnt({D-1-self.lo})")
            self.lab(l)
        VPG, VCT, VZ0 = 23, 11, 9
        def ctl_top(wait=True):
            if wait: A("s_waitcnt lgkmcnt(0)")
            A(f"v_readfirstlane_b32 s43, v{VCT}")
            A(f"v_mov_b32 v{T0}, s42")
            A(f"ds_write_b32 v{VPG}, v{T0}")
            A(f"ds_read_b32 v{VCT}, v{VZ0} offset:{L_CT}")
            A("s_cmp_lt_u32 s42, s43"); A("s_cselect_b64 vcc, -1, 0")
            A("s_add_u32 s42, s42, 1")
        def dots(i, reg=None):
            b = RB + 4 * i if reg is None else reg
            if "nok" in self.dbg: return
            A(f"v_dot2_f32_bf16 v{P+i}, v{b}, v{Q}, 0")
            for k in range(1, 4):
                A(f"v_dot2_f32_bf16 v{P+i}, v{b+k}, v{Q+k}, v{P+i}")
        def l1(a, b):
            A(f"v_add_f32_dpp v{P+a}, v{P+a}, v{P+a} row_ror:8 row_mask:0xf bank_mask:0x3")
            A(f"v_add_f32_dpp v{P+a}, v{P+b}, v{P+b} row_ror:8 row_mask:0xf bank_mask:0xc")
        def l2(a, b):
            A(f"v_add_f32_dpp v{P+a}, v{P+a}, v{P+a} row_half_mirror row_mask:0xf bank_mask:0x5")
            A(f"v_add_f32_dpp v{P+a}, v{P+b}, v{P+b} row_half_mirror row_mask:0xf bank_mask:0xa")
        def l34(a, b, sm, qp):
            A(f"v_cndmask_b32 v{T0}, v{P+b}, v{P+a}, s[{sm}:{sm+1}]")
            A(f"v_cndmask_b32 v{T1}, v{P+a}, v{P+b}, s[{sm}:{sm+1}]")
            self.nop(2)
            A(f"v_add_f32_dpp v{P+a}, v{T0}, v{T1} quad_perm:{qp} row_mask:0xf bank_mask:0xf")
        def combos_after(i):
            if "nok" in self.dbg: return
            if i >= 2 and i % 2 == 0: l1(i - 2, i - 1)
            if i >= 5 and i % 4 == 1: l2(i - 5, i - 3)
            if i == 11: l34(0, 4, 10, "[1,0,3,2]")
        def finish_iter():
            self.nop(3)
            l1(14, 15)
            self.nop(2)
            l2(12, 14)
            self.nop(1)
            l34(8, 12, 10, "[1,0,3,2]")
            self.nop(1)
            l34(0, 8, 12, "[2,3,0,1]")
            S = P
            if "noround" not in self.dbg: self.rnd_bf16(S, S)
            A(f"v_mul_f32 v{S}, s14, v{S}")
            if "noround" not in self.dbg: self.rnd_bf16(S, S)
            A(f"ds_write_b32 v{SCA}, v{S}")
            A(f"v_add_u32 v{SCA}, 256, v{SCA}")
            A(f"v_max_f32 v{T0}, v{M}, v{S}")
            A(f"v_sub_f32 v{T1}, v{M}, v{T0}")
            A(f"v_sub_f32 v{S}, v{S}, v{T0}")
            A(f"v_mul_f32 v{T1}, s15, v{T1}")
            A(f"v_mul_f32 v{S}, s15, v{S}")
            A(f"v_exp_f32 v{T1}, v{T1}")
            A(f"v_exp_f32 v{S}, v{S}")
            A(f"v_mov_b32 v{M}, v{T0}")
            A(f"v_fma_f32 v{LS}, v{LS}, v{T1}, v{S}")
        NCU = NPRE + 16
        issued = NPRE
        last_issue = NCU + D
        ratio = NPRE // 16
        for t in range(NCU):
            need = issued - 1 - t
            wait_tile(min(need, 63))
            dots(t % 16, slot_reg(t))
            combos_after(t % 16)
            if t % 16 == 15: finish_iter()
            want = False
            if t < NPRE:
                want = (t % ratio == ratio - 1)
            else:
                k = issued - NCU
                want = (t - NPRE + 1) * D >= (k + 1) * 16
            while want and issued < last_issue:
                assert issued - 16 <= t if issued >= NCU else (issued % 16) <= t
                A(f"s_waitcnt vmcnt({DW-1})")
                load(issued, 44); issued += 1
                want = False
        assert issued == last_issue, (issued, last_issue)
        A(f"s_mov_b32 s9, {31 - NCU // 16}")
        if True:
            A(f"s_mov_b32 s42, {NCU // 16}")
            A(f"v_mov_b32 v{VCT}, 0"); A(f"v_mov_b32 v{VZ0}, 0")
            A(f"s_lshl_b32 s7, s3, 2"); A(f"s_add_u32 s7, s7, {L_PG}"); A(f"v_mov_b32 v{VPG}, s7")
        self.lab("L_kloop")
        ctl_top()
        for i in range(16):
            wait_tile(D - 1); mode_wait(); load(i + D, 44); dots(i); combos_after(i)
        finish_iter()
        A("s_sub_u32 s9, s9, 1"); A("s_cmp_lg_u32 s9, 0"); A("s_cbranch_scc1 L_kloop")
        ctl_top()
        for i in range(16):
            wait_tile(D - 1); mode_wait()
            if i + D == 16 and not self.rot: A("s_mov_b32 s8, 0")
            load(i + D, 44 if i + D < 16 else 48); dots(i); combos_after(i)
        finish_iter()
        self.stamp(2)
        A(f"v_subrev_u32 v{SCA}, 8192, v{SCA}")
        A(f"ds_read_b32 v{SN}, v{SCA}")
        A(f"v_mov_b32 v{P}, v{M}")
        self.bfly("v_max_f32", P, T0)
        A(f"v_sub_f32 v{T1}, v{M}, v{P}")
        A(f"v_mul_f32 v{T1}, s15, v{T1}")
        A(f"v_exp_f32 v{T1}, v{T1}")
        A(f"v_mov_b32 v{M}, v{P}")
        A(f"v_mul_f32 v{P+1}, v{LS}, v{T1}")
        self.bfly("v_add_f32", P + 1, T0)
        A(f"v_mov_b32 v{P+2}, 1"); A(f"v_mov_b32 v{P+3}, 0")
        A(f"s_lshl_b32 s7, s3, 4"); A(f"s_add_u32 s7, s7, {L_ST}"); A(f"v_mov_b32 v{T0}, s7")
        A("s_mov_b64 exec, 1")
        A(f"ds_write_b128 v{T0}, v[{P}:{P+3}]")
        A("s_mov_b64 exec, -1")
        NSP = self.nsp
        st = {"issued": D}
        def v_iter(last, sp=None):
            A("s_waitcnt lgkmcnt(0)")
            if sp is None: ctl_top(False)
            A(f"v_sub_f32 v{PK}, v{SN}, v{M}")
            A(f"v_mul_f32 v{PK}, s15, v{PK}")
            A(f"v_exp_f32 v{PK}, v{PK}")
            if not last:
                A(f"v_add_u32 v{SCA}, 256, v{SCA}")
                A(f"ds_read_b32 v{SN}, v{SCA}")
            else:
                self.nop(1)
            A(f"v_cvt_pk_bf16_f32 v{PK}, v{PK}, v{PK}")
            self.nop(2)
            for i in range(16):
                a = AA[i % 2]
                for k in range(4 if "nov" not in self.dbg else 0):
                    A(f"v_and_b32_dpp v{a+k}, v{PK}, v{4+k} row_newbcast:{c_of_tile(i)} row_mask:0xf bank_mask:0xf")
                if sp is None:
                    wait_tile(D - 1); mode_wait(); load(i + D, 48)
                else:
                    t = sp * 16 + i
                    wait_tile(st["issued"] - 1 - t)
                    n = 0
                    while st["issued"] < NSP * 16 and st["issued"] - t <= self.dend and st["issued"] - 16 < t and n < 2:
                        if self.dend <= D and n == 0: mode_wait()
                        load(st["issued"], 48); st["issued"] += 1; n += 1
                        if self.dend <= D: break
                    if n == 0: self.nop(1)
                b = RB + 4 * i
                if "nov" not in self.dbg and "nomfma" not in self.dbg:
                    A(f"v_mfma_f32_16x16x32_bf16 v[{ACC}:{ACC+3}], v[{a}:{a+3}], v[{b}:{b+3}], v[{ACC}:{ACC+3}]")
        A(f"s_mov_b32 s9, {32 - NSP}")
        self.lab("L_vloop")
        v_iter(False)
        A(f"s_cmp_lg_u32 s9, {self.TRIG - NSP + 1}"); A("s_cbranch_scc1 L_notrig")
        A(f"v_mov_b32 v{T0}, {L_TR}"); A(f"v_mov_b32 v{T1}, 1")
        A(f"ds_write_b32 v{T0}, v{T1}")
        self.lab("L_notrig")
        A("s_sub_u32 s9, s9, 1"); A("s_cmp_lg_u32 s9, 0"); A("s_cbranch_scc1 L_vloop")
        A(f"s_lshl_b32 s7, s3, 9"); A(f"s_add_u32 s7, s7, {L_OP}")
        A(f"v_lshlrev_b32 v{T0}, 5, v1"); A(f"v_lshlrev_b32 v{T1}, 4, v2"); A(f"v_add3_u32 v{T0}, v{T0}, v{T1}, s7")
        for sp in range(NSP): v_iter(sp == NSP - 1, sp)
        assert st["issued"] == NSP * 16
        A("s_mov_b32 exec_hi, 0")
        self.nop(8)
        A(f"ds_write_b128 v{T0}, v[{ACC}:{ACC+3}]")
        A("s_waitcnt lgkmcnt(0)")
        A("s_barrier")
        self.stamp(3)
        self.stamp_out(5)
        A("s_endpgm")

    def diag_mfmas(self, n, pk_of, wb, acc, waitbase, first_zero=True, hilo=False, sel=None, tb=None):
        A = self.A
        AA = (24, 28)
        def build(j):
            a = AA[j % 2]
            if not hilo:
                for k in range(4):
                    A(f"v_and_b32_dpp v{a+k}, v{pk_of(j)}, v{4+k} row_newbcast:{j%16} row_mask:0xf bank_mask:0xf")
            else:
                A(f"v_mov_b32_dpp v{tb}, v{pk_of(j)} row_newbcast:{j%16} row_mask:0xf bank_mask:0xf")
                for k in range(4):
                    A(f"v_perm_b32 v{a+k}, v{tb}, v{tb}, v{sel+k}")
        build(0)
        for j in range(n):
            if j + 1 < n: build(j + 1)
            else: self.nop(2)
            if waitbase is not None: A(f"s_waitcnt vmcnt({waitbase - j})")
            a = AA[j % 2]; b = wb + 4 * j
            c = "0" if (j == 0 and first_zero) else f"v[{acc}:{acc+3}]"
            A(f"v_mfma_f32_16x16x32_bf16 v[{acc}:{acc+3}], v[{a}:{a+3}], v[{b}:{b+3}], {c}")

    def check_flags(self, vt, va, sc):
        A = self.A
        l0 = self.newlab("L_fl"); l1 = self.newlab("L_fld")
        A(f"v_and_b32 v{va}, 31, v0"); A(f"v_lshlrev_b32 v{va}, 2, v{va}")
        A(f"s_mov_b32 s{sc}, 0")
        self.lab(l0)
        A(f"buffer_load_dword v{vt}, v{va}, s[60:63], 0 offen sc1")
        A("s_waitcnt vmcnt(0)")
        A(f"v_cmp_eq_u32 vcc, 0, v{vt}")
        A(f"s_add_u32 s{sc}, s{sc}, 1")
        A(f"s_cmp_ge_u32 s{sc}, {SPIN_MAX}"); A(f"s_cbranch_scc1 {l1}")
        A(f"s_cbranch_vccz {l1}")
        A("s_sleep 64")
        A(f"s_branch {l0}")
        self.lab(l1)

    def wloads(self, WB, VO, srd, step, imm=0, pace=0):
        A = self.A
        A("s_mov_b32 s8, 0")
        for j in range(32):
            o = f" offset:{imm}" if imm else ""
            A(f"buffer_load_dwordx4 v[{WB+4*j}:{WB+4*j+3}], v{VO}, s[{srd}:{srd+3}], s8 offen{o}{self.wpol}")
            if j < 31: A(f"s_add_u32 s8, s8, {step}")
            if pace: A(f"s_waitcnt vmcnt({pace-1})")

    def helper_wave(self):
        A = self.A
        WB = 128
        XV = 32
        XD = 44
        T0, T1, T2 = 16, 17, 18
        MEAN, RS = 19, 20
        VZ = 21
        VO = 22
        VL = 23
        VD = 46
        VM = 48
        ACC = 52
        SEL = 56
        ACC2 = 60
        G = 64
        A("s_sub_u32 s9, s3, 4")
        A("s_waitcnt lgkmcnt(0)")
        self.stamp(9)
        self.srd(44, 16, 1024)
        self.srd(48, 22, 512 * 8192 if "nowq" not in self.dbg else 0)
        A(f"v_lshlrev_b32 v{T0}, 4, v0")
        A(f"buffer_load_dwordx4 v[{XV}:{XV+3}], v{T0}, s[44:47], 0 offen")
        A(f"v_lshlrev_b32 v{VD}, 2, v1"); A(f"v_add_u32 v{VD}, v{VD}, v2"); A(f"v_lshlrev_b32 v{T1}, 1, v{VD}")
        A("s_lshl_b32 s7, s9, 8")
        A(f"buffer_load_ushort v{XD}, v{T1}, s[44:47], s7 offen")
        A(f"buffer_load_ushort v{XD+1}, v{T1}, s[44:47], s7 offen offset:128")
        A("s_lshl_b32 s7, s4, 8"); A("s_lshl_b32 s8, s9, 20"); A("s_add_u32 s7, s7, s8")
        A(f"v_lshlrev_b32 v{VO}, 13, v2"); A(f"v_lshlrev_b32 v{T2}, 4, v1"); A(f"v_add3_u32 v{VO}, v{VO}, v{T2}, s7")
        self.wloads(WB, VO, 48, 32768, pace=self.wqpace)
        self.srd(60, 38, 256)
        self.srd(64, 40, WS_BYTES)
        self.srd(52, 40, WS_BYTES)
        A("s_cmp_lt_u32 s2, 32"); A(f"s_cselect_b32 s54, {WS_BYTES if 'noinit' not in self.dbg else W_PART}, 0")
        for r in range(4): A(f"v_mov_b32 v{VM+r}, -1")
        A("s_lshl_b32 s7, s2, 14"); A("s_lshl_b32 s8, s9, 12"); A("s_add_u32 s7, s7, s8"); A(f"s_add_u32 s7, s7, {W_PART}")
        for k in range(4):
            A(f"buffer_store_dwordx4 v[{VM}:{VM+3}], v{T0}, s[52:55], s7 offen offset:{1024*k} sc1")
        A("s_lshl_b32 s7, s2, 11"); A("s_lshl_b32 s8, s9, 10"); A("s_add_u32 s7, s7, s8"); A(f"s_add_u32 s7, s7, {W_PART + 256*2048 - 1024}")
        A(f"s_cmp_lt_u32 s2, {NFFN}"); A(f"s_cselect_b32 s7, s7, {WS_BYTES}")
        A("s_lshl_b32 s8, s2, 10"); A(f"s_add_u32 s8, s8, {W_PG}")
        A("s_cmp_eq_u32 s9, 3"); A(f"s_cselect_b32 s7, s8, s7")
        A("s_cmp_eq_u32 s9, 0"); A(f"s_cselect_b32 s7, {WS_BYTES}, s7")
        A(f"buffer_store_dwordx4 v[{VM}:{VM+3}], v{T0}, s[52:55], s7 offen sc1")
        NS = 5
        A(f"v_mov_b32 v{VZ}, 0")
        A(f"v_lshlrev_b32 v{VD}, 2, v{VD}")
        A(f"v_lshlrev_b32 v{VL}, 5, v1"); A(f"v_and_b32 v{T1}, 1, v2"); A(f"v_lshlrev_b32 v{T1}, 4, v{T1}"); A(f"v_add_u32 v{VL}, v{VL}, v{T1}")
        A(f"v_lshlrev_b32 v{T2}, 2, v0")
        A("s_mov_b32 exec_hi, 0")
        A(f"ds_write_b32 v{T2}, v{VZ} offset:{L_ST}")
        A("s_mov_b64 exec, -1")
        self.stamp(10)
        A(f"s_waitcnt vmcnt({34+NS})")
        self.stamp(11)
        U = XV + 4
        for k in range(4):
            A(f"v_lshlrev_b32 v{U+2*k}, 16, v{XV+k}")
            A(f"v_and_b32 v{U+2*k+1}, 0xffff0000, v{XV+k}")
        A(f"v_add_f32 v{MEAN}, v{U}, v{U+1}")
        for e in range(2, 8): A(f"v_add_f32 v{MEAN}, v{MEAN}, v{U+e}")
        self.bfly("v_add_f32", MEAN, T0)
        A(f"v_mul_f32 v{MEAN}, {f32(1.0/512)}, v{MEAN}")
        for e in range(8): A(f"v_sub_f32 v{U+e}, v{U+e}, v{MEAN}")
        A(f"v_mul_f32 v{RS}, v{U}, v{U}")
        for e in range(1, 8): A(f"v_fmac_f32 v{RS}, v{U+e}, v{U+e}")
        self.bfly("v_add_f32", RS, T0)
        A(f"v_mul_f32 v{RS}, {f32(1.0/512)}, v{RS}")
        self.rnd_bf16(MEAN, MEAN)
        self.rnd_bf16(RS, RS)
        A(f"v_add_f32 v{RS}, {f32(1e-5)}, v{RS}")
        self.rnd_bf16(RS, RS)
        A(f"v_sqrt_f32 v{RS}, v{RS}")
        self.nop(1)
        self.rnd_bf16(RS, RS)
        A(f"v_rcp_f32 v{RS}, v{RS}")
        def xn_pack(r):
            A(f"v_lshlrev_b32 v{r}, 16, v{r}")
            A(f"v_sub_f32 v{r}, v{r}, v{MEAN}")
            self.rnd_bf16(r, r)
            A(f"v_mul_f32 v{r}, v{r}, v{RS}")
            A(f"v_cvt_pk_bf16_f32 v{r}, v{r}, v{r}")
        self.stamp(12)
        A(f"s_waitcnt vmcnt({32+NS})")
        xn_pack(XD); xn_pack(XD + 1)
        self.nop(2)
        self.stamp(7)
        self.diag_mfmas(32, lambda j: XD + j // 16, WB, ACC, 31 + NS)
        A(f"s_lshl_b32 s7, s9, 9")
        A(f"v_add_u32 v{T0}, s7, v{VL}")
        A("s_mov_b32 exec_hi, 0")
        self.nop(6)
        A(f"ds_write_b128 v{T0}, v[{ACC}:{ACC+3}] offset:{L_QP}")
        A("s_mov_b32 exec_hi, -1")
        self.stamp(8)
        A("s_waitcnt vmcnt(0) lgkmcnt(0)")
        A("s_barrier")
        self.stamp(1)
        lskip = self.newlab("L_noflag")
        A("s_cmp_ge_u32 s2, 32"); A(f"s_cbranch_scc1 {lskip}")
        A("s_cmp_lg_u32 s9, 0"); A(f"s_cbranch_scc1 {lskip}")
        A(f"v_mov_b32 v{T1}, 1"); A("s_lshl_b32 s7, s2, 2")
        A("s_mov_b64 exec, 1")
        A(f"buffer_store_dword v{T1}, v{VZ}, s[60:63], s7 offen sc1")
        A("s_mov_b64 exec, -1")
        self.lab(lskip)
        lnf = self.newlab("L_noffn")
        A(f"s_sub_u32 s10, s2, {FFN_WG0}"); A(f"s_cmp_ge_u32 s10, {NFFN}"); A(f"s_cbranch_scc1 {lnf}")
        if "noffn" not in self.dbg: self.ffn(WB, XD, VZ, VO, VL, VD, ACC, ACC2, G)
        self.lab(lnf)
        self.srd(48, 24, 4096 * 1024 if "nowo" not in self.dbg else 0)
        A("s_lshl_b32 s7, s4, 17"); A("s_lshl_b32 s8, s9, 8"); A("s_add_u32 s7, s7, s8")
        A(f"v_lshlrev_b32 v{VO}, 10, v2"); A(f"v_lshlrev_b32 v{T2}, 4, v1"); A(f"v_add3_u32 v{VO}, v{VO}, v{T2}, s7")
        if self.wodelay:
            l0 = self.newlab("L_wd"); l1 = self.newlab("L_wdd")
            A("s_mov_b32 s10, 0")
            self.lab(l0)
            A(f"ds_read_b32 v{T0}, v{VZ} offset:{L_PG}")
            A("s_waitcnt lgkmcnt(0)")
            A(f"v_readfirstlane_b32 s8, v{T0}")
            A("s_add_u32 s10, s10, 1")
            A(f"s_cmp_ge_u32 s10, {SPIN_MAX*20}"); A(f"s_cbranch_scc1 {l1}")
            A(f"s_cmp_ge_u32 s8, {self.wodelay}"); A(f"s_cbranch_scc1 {l1}")
            A("s_sleep 12")
            A(f"s_branch {l0}")
            self.lab(l1)
        savepol = self.wpol
        if self.wopol is not None: self.wpol = self.wopol
        self.wloads(WB, VO, 48, 4096, pace=self.wopace)
        self.wpol = savepol
        A(f"v_mov_b32 v{T0}, 0x0100"); A(f"v_mov_b32 v{T1}, 0x0302")
        A("v_cmp_gt_u32 vcc, 8, v1"); self.nop(2)
        A(f"v_cndmask_b32 v{T0}, v{T1}, v{T0}, vcc")
        A(f"v_lshlrev_b32 v{T1}, 16, v{T0}"); A(f"v_or_b32 v{T0}, v{T0}, v{T1}")
        A(f"v_and_b32 v{T1}, 7, v1"); A(f"v_lshrrev_b32 v{T2}, 1, v{T1}")
        A(f"v_and_b32 v{T1}, 1, v1"); A(f"v_lshlrev_b32 v{T1}, 4, v{T1}")
        A(f"v_mov_b32 v{ACC2}, 0xffff"); A(f"v_lshlrev_b32 v{T1}, v{T1}, v{ACC2}")
        A(f"v_mov_b32 v{ACC2}, 0x0c0c0c0c")
        A(f"v_bfi_b32 v{T0}, v{T1}, v{T0}, v{ACC2}")
        for k in range(4):
            A(f"v_cmp_eq_u32 vcc, {k}, v{T2}"); self.nop(2)
            A(f"v_cndmask_b32 v{SEL+k}, v{ACC2}, v{T0}, vcc")
        VG = 47
        A(f"v_lshrrev_b32 v{VG}, 2, v0"); A(f"v_lshlrev_b32 v{VG}, 11, v{VG}")
        A(f"v_and_b32 v{T0}, 3, v0"); A(f"v_lshlrev_b32 v{T0}, 4, v{T0}"); A(f"v_add_u32 v{VG}, v{VG}, v{T0}")
        lns = self.newlab("L_nosync")
        A("s_cmp_lg_u32 s9, 0"); A(f"s_cbranch_scc1 {lns}")
        self.sync_wave(VZ, G)
        self.lab(lns)
        BF, XF = 34, 35
        lnb = self.newlab("L_nob")
        A("s_cmp_lg_u32 s9, 1"); A(f"s_cbranch_scc1 {lnb}")
        A("s_cmp_ge_u32 s2, 32"); A(f"s_cbranch_scc1 {lnb}")
        if "noffn" not in self.dbg: self.bpart(BF, XF, ACC2, VZ, VG, G)
        self.lab(lnb)
        A("s_lshl_b32 s7, s2, 11"); A("s_lshl_b32 s8, s9, 9"); A("s_add_u32 s7, s7, s8"); A(f"s_add_u32 s7, s7, {W_PART}")
        A("s_lshl_b32 s12, s9, 17"); A("s_lshl_b32 s8, s2, 6"); A("s_add_u32 s12, s12, s8"); A(f"s_add_u32 s12, s12, {W_PART}")
        for k in range(1, 4): A(f"s_add_u32 s{12+k}, s12, {32768*k}")
        A("s_waitcnt vmcnt(0) lgkmcnt(0)")
        self.stamp(2)
        A("s_barrier")
        self.stamp(3)
        if "notail" in self.dbg: A("s_endpgm")
        OP = 36
        FW = ACC2
        A(f"ds_read_b128 v[{FW}:{FW+3}], v{VZ} offset:{L_FW}")
        for w in range(4):
            A(f"ds_read_b32 v{OP+2*w}, v{VD} offset:{L_OP+512*w}")
            A(f"ds_read_b32 v{OP+2*w+1}, v{VD} offset:{L_OP+512*w+256}")
        A("s_waitcnt lgkmcnt(0)")
        for i in range(2):
            A(f"v_mul_f32 v{XD+i}, v{FW}, v{OP+i}")
            for w in range(1, 4): A(f"v_fmac_f32 v{XD+i}, v{FW+w}, v{OP+2*w+i}")
        if "nohilo" in self.dbg:
            for i in range(2): A(f"v_cvt_pk_bf16_f32 v{XD+i}, v{XD+i}, v{XD+i}")
            self.nop(2)
            self.diag_mfmas(32, lambda j: XD + j // 16, WB, ACC, None)
            self.nop(8)
        else:
            for i in range(2):
                self.rnd_bf16(T1 + i, XD + i)
                A(f"v_sub_f32 v{T1+i}, v{XD+i}, v{T1+i}")
                A(f"v_cvt_pk_bf16_f32 v{XD+i}, v{XD+i}, v{T1+i}")
            self.nop(2)
            self.diag_mfmas(32, lambda j: XD + j // 16, WB, ACC, None, hilo=True, sel=SEL, tb=T0)
            self.nop(8)
            for r in range(4): A(f"v_mov_b32 v{ACC2+r}, v{ACC+r}")
            self.nop(1)
            for r in range(4): A(f"v_permlane32_swap_b32 v{ACC+r}, v{ACC2+r}")
            for r in range(4): A(f"v_add_f32 v{ACC+r}, v{ACC+r}, v{ACC2+r}")
        for r in range(4): A(f"v_min_u32 v{ACC+r}, -2, v{ACC+r}")
        A("s_mov_b32 exec_hi, 0")
        A(f"buffer_store_dwordx4 v[{ACC}:{ACC+3}], v{VL}, s[64:67], s7 offen sc1")
        A("s_mov_b32 exec_hi, -1")
        self.stamp(4)
        lfin = self.newlab("L_hend")
        A("s_cmp_ge_u32 s2, 32"); A(f"s_cbranch_scc1 {lfin}")
        lp = self.newlab("L_gat"); lpd = self.newlab("L_gatd")
        def gl(base):
            for k in range(4):
                A(f"buffer_load_dwordx4 v[{base+4*k}:{base+4*k+3}], v{VG}, s[64:67], s{12+k} offen sc1")
        def gchk(base):
            A(f"v_max3_u32 v{T1}, v{base}, v{base+1}, v{base+2}")
            for k in range(3, 15, 2): A(f"v_max3_u32 v{T1}, v{T1}, v{base+k}, v{base+k+1}")
            A(f"v_max_u32 v{T1}, v{T1}, v{base+15}")
            A(f"v_cmp_eq_u32 vcc, -1, v{T1}")
        A("s_mov_b32 s10, 0")
        if "pp" in self.dbg:
            G2 = G + 16; lb = self.newlab("L_gatb")
            gl(G)
            A(f"s_sleep {self.ppd}")
            gl(G2)
            self.lab(lp)
            A("s_waitcnt vmcnt(4)")
            gchk(G)
            A("s_add_u32 s10, s10, 1")
            A(f"s_cmp_ge_u32 s10, {SPIN_MAX}"); A(f"s_cbranch_scc1 {lpd}")
            A(f"s_cbranch_vccz {lpd}")
            gl(G)
            A("s_waitcnt vmcnt(4)")
            gchk(G2)
            self.nop(4)
            A(f"s_cbranch_vccz {lb}")
            gl(G2)
            A(f"s_branch {lp}")
            self.lab(lb)
            G3 = G + 32
            for r in range(4):
                A(f"v_add_f32 v{G3+r}, v{G2+r}, v{G2+4+r}")
                A(f"v_add_f32 v{G3+8+r}, v{G2+8+r}, v{G2+12+r}")
            lj = self.newlab("L_gatj")
            A(f"s_branch {lj}")
            self.lab(lpd)
            for r in range(4):
                A(f"v_add_f32 v{G3+r}, v{G+r}, v{G+4+r}")
                A(f"v_add_f32 v{G3+8+r}, v{G+8+r}, v{G+12+r}")
            self.lab(lj)
            G = G3
        else:
            self.lab(lp)
            gl(G)
            A("s_waitcnt vmcnt(0)")
            gchk(G)
            A("s_add_u32 s10, s10, 1")
            A(f"s_cmp_ge_u32 s10, {SPIN_MAX}"); A(f"s_cbranch_scc1 {lpd}")
            A(f"s_cbranch_vccnz {lp}")
            self.lab(lpd)
            for r in range(4):
                A(f"v_add_f32 v{G+r}, v{G+r}, v{G+4+r}")
                A(f"v_add_f32 v{G+8+r}, v{G+8+r}, v{G+12+r}")
        self.stamp(5)
        for r in range(4): A(f"v_add_f32 v{G+r}, v{G+r}, v{G+8+r}")
        self.quad_col_reduce(G, G + 4)
        A(f"s_lshl_b32 s7, s9, 6"); A(f"v_lshlrev_b32 v{T0}, 4, v0"); A(f"v_add_u32 v{T0}, s7, v{T0}")
        A("s_mov_b64 exec, 0xf")
        A(f"ds_write_b128 v{T0}, v[{G}:{G+3}] offset:{L_FIN}")
        A("s_mov_b64 exec, -1")
        A("s_waitcnt lgkmcnt(0)")
        A("s_barrier")
        A("s_cmp_lg_u32 s9, 1"); A(f"s_cbranch_scc1 {lfin}")
        A(f"v_lshlrev_b32 v{T0}, 2, v1")
        for h in range(4): A(f"ds_read_b32 v{G+h}, v{T0} offset:{L_FIN+64*h}")
        self.srd(44, 36, 1024)
        A("s_lshl_b32 s7, s2, 5")
        A(f"v_lshlrev_b32 v{T0}, 1, v1")
        A("s_waitcnt lgkmcnt(0)")
        A(f"v_add_f32 v{G}, v{G}, v{G+1}"); A(f"v_add_f32 v{G+2}, v{G+2}, v{G+3}"); A(f"v_add_f32 v{G}, v{G}, v{G+2}")
        self.rnd_bf16(G, G)
        A(f"v_add_f32 v{G}, v{XF}, v{G}")
        self.rnd_bf16(G, G)
        A(f"v_add_f32 v{G}, v{G}, v{BF}")
        A(f"v_cvt_pk_bf16_f32 v{G}, v{G}, v{G}")
        A("s_mov_b64 exec, 0xffff")
        A(f"buffer_store_short v{G}, v{T0}, s[44:47], s7 offen")
        self.stamp(6)
        self.lab(lfin)
        self.stamp_out(13)

    def quad_col_reduce(self, R, T):
        A = self.A
        for ctl in ("row_ror:4", "row_ror:8"):
            self.nop(2)
            for r in range(4):
                A(f"v_add_f32_dpp v{R+r}, v{R+r}, v{R+r} {ctl} row_mask:0xf bank_mask:0xf")
        for s in ("v_permlane16_swap_b32", "v_permlane32_swap_b32"):
            for r in range(4): A(f"v_mov_b32 v{T+r}, v{R+r}")
            self.nop(1)
            for r in range(4): A(f"{s} v{R+r}, v{T+r}")
            for r in range(4): A(f"v_add_f32 v{R+r}, v{R+r}, v{T+r}")

    def sync_wave(self, VZ, G):
        A = self.A
        T0, T1, T2 = 16, 17, 18
        VA, VW, PL, RD = G, G + 1, G + 2, G + 4
        if self.wgmap == "B":
            A(f"v_lshrrev_b32 v{T0}, 2, v0"); A(f"v_lshlrev_b32 v{T0}, 5, v{T0}"); A("s_and_b32 s7, s2, 31"); A(f"v_add_u32 v{T0}, s7, v{T0}")
        else:
            A(f"v_lshrrev_b32 v{T0}, 2, v0"); A("s_and_b32 s7, s2, 0xf8"); A(f"v_add_u32 v{T0}, s7, v{T0}")
        A(f"v_and_b32 v{T0}, 255, v{T0}")
        A(f"v_lshlrev_b32 v{T0}, 7, v{T0}"); A(f"v_and_b32 v{T1}, 3, v0"); A(f"v_lshlrev_b32 v{T1}, 3, v{T1}"); A(f"v_add_u32 v{T0}, v{T0}, v{T1}")
        A(f"v_mul_u32_u24 v{T1}, 15, v1"); A(f"v_add_u32 v{T1}, 1, v{T1}"); A(f"v_add_u32 v{T1}, s2, v{T1}")
        A(f"v_and_b32 v{T1}, 255, v{T1}"); A(f"v_lshlrev_b32 v{T1}, 7, v{T1}"); A(f"v_add_u32 v{T1}, 64, v{T1}")
        A("v_cmp_gt_u32 vcc, 32, v0"); self.nop(2)
        A(f"v_cndmask_b32 v{VA}, v{T1}, v{T0}, vcc")
        A("s_lshl_b32 s7, s2, 7"); A(f"v_lshlrev_b32 v{VW}, 3, v1"); A(f"v_add_u32 v{VW}, s7, v{VW}")
        A(f"v_mov_b32 v{PL}, -1"); A(f"v_mov_b32 v{PL+1}, -1")
        A(f"s_mov_b32 s11, {W_PG}")
        A(f"v_and_b32 v{T2}, 3, v0"); A(f"v_lshlrev_b32 v{T2}, 4, v{T2}")
        ms = self.miles + [64]
        assert 32 in self.miles
        kst = max(k for k in range(len(self.miles)) if self.miles[k] <= 64 - self.TRIG)
        for k in range(len(self.miles)):
            m, nx = ms[k], ms[k + 1]
            l0 = self.newlab("L_ms"); l1 = self.newlab("L_msd"); l2 = self.newlab("L_msn")
            A("s_mov_b32 s10, 0")
            self.lab(l0)
            if m == 32:
                A(f"ds_read_b128 v[{RD}:{RD+3}], v{T2} offset:{L_ST}")
                A("s_waitcnt lgkmcnt(0)")
                A(f"v_cmp_ne_u32 vcc, 1, v{RD+2}")
                A("s_add_u32 s10, s10, 1")
                A(f"s_cmp_ge_u32 s10, {SPIN_MAX*20}"); A(f"s_cbranch_scc1 {l1}")
                A(f"s_cbranch_vccz {l1}")
            else:
                A(f"ds_read_b32 v{T0}, v{VZ} offset:{L_PG}")
                A("s_waitcnt lgkmcnt(0)")
                A(f"v_readfirstlane_b32 s8, v{T0}")
                A("s_add_u32 s10, s10, 1")
                A(f"s_cmp_ge_u32 s10, {SPIN_MAX*20}"); A(f"s_cbranch_scc1 {l1}")
                A(f"s_cmp_ge_u32 s8, {m}"); A(f"s_cbranch_scc1 {l1}")
            A("s_sleep 12")
            A(f"s_branch {l0}")
            self.lab(l1)
            if k == 0:
                self.check_flags(T1, T0, 10)
            if m == 32:
                A("s_mov_b64 exec, 0xf")
                A(f"v_min_u32 v{PL}, -2, v{RD}"); A(f"v_min_u32 v{PL+1}, -2, v{RD+1}")
            elif k != kst and nx < 64:
                A(f"s_cmp_ge_u32 s8, {nx}"); A(f"s_cbranch_scc1 {l2}")
            A("s_mov_b64 exec, 0xfff0")
            A(f"v_mov_b32 v{PL}, {m}"); A(f"v_mov_b32 v{PL+1}, {m}")
            A("s_mov_b64 exec, 0xffff")
            A(f"buffer_store_dwordx2 v[{PL}:{PL+1}], v{VW}, s[64:67], s11 offen sc1")
            lr = self.newlab("L_rd"); lrd = self.newlab("L_rdd")
            A("s_mov_b32 s10, 0")
            self.lab(lr)
            if k == kst:
                A("s_mov_b32 exec_lo, -1"); A("s_mov_b32 exec_hi, 0xffff")
            else:
                A("s_mov_b32 exec_lo, 0"); A("s_mov_b32 exec_hi, 0xffff")
            A(f"buffer_load_dwordx2 v[{RD}:{RD+1}], v{VA}, s[64:67], s11 offen sc1")
            A("s_waitcnt vmcnt(0)")
            A("s_mov_b32 exec_lo, 0")
            A(f"v_cmp_le_i32 vcc, {m}, v{RD}")
            A("s_mov_b64 exec, -1")
            self.nop(4)
            A("s_bcnt1_i32_b64 s8, vcc")
            if self.c0:
                A(f"s_max_u32 s8, s8, {self.c0}"); A(f"s_sub_u32 s8, s8, {self.c0}")
            A(f"s_mul_i32 s8, s8, {(nx - m) * self.gain}")
            A("s_add_u32 s8, s8, 128"); A("s_lshr_b32 s8, s8, 8")
            A(f"s_min_u32 s8, s8, {nx - m}")
            A(f"s_add_u32 s8, s8, {m + 2}")
            A(f"v_mov_b32 v{T0}, s8")
            if self.ctl: A(f"ds_write_b32 v{VZ}, v{T0} offset:{L_CT}")
            if k == kst:
                A("s_mov_b32 exec_hi, 0")
                A(f"v_max_u32 v{T1}, v{RD}, v{RD+1}")
                A(f"v_cmp_eq_u32 vcc, -1, v{T1}")
                A("s_mov_b64 exec, -1")
                A("s_add_u32 s10, s10, 1")
                A(f"s_cmp_ge_u32 s10, {SPIN_MAX}"); A(f"s_cbranch_scc1 {lrd}")
                A(f"s_cbranch_vccz {lrd}")
                A("s_sleep 64")
                A(f"s_branch {lr}")
                self.lab(lrd)
                A(f"v_mov_b32 v{RD+2}, v{RD}")
                self.bfly("v_max_f32", RD + 2, T1, full=False)
                A(f"v_sub_f32 v{RD}, v{RD}, v{RD+2}")
                A(f"v_mul_f32 v{RD}, {f32(LOG2E)}, v{RD}")
                A(f"v_exp_f32 v{RD}, v{RD}")
                self.nop(1)
                A(f"v_mul_f32 v{RD+1}, v{RD+1}, v{RD}")
                self.bfly("v_add_f32", RD + 1, T1, full=False)
                A(f"v_rcp_f32 v{RD+1}, v{RD+1}")
                self.nop(1)
                A(f"v_mul_f32 v{RD}, v{RD}, v{RD+1}")
                A(f"v_and_b32 v{T0}, 3, v0"); A(f"v_lshlrev_b32 v{T0}, 2, v{T0}")
                A("s_lshl_b32 s8, s5, 2")
                A("s_lshl_b64 s[12:13], 15, s8")
                A("s_mov_b64 exec, s[12:13]")
                A(f"ds_write_b32 v{T0}, v{RD} offset:{L_FW}")
                A("s_mov_b64 exec, -1")
            self.lab(l2)
        A("s_mov_b64 exec, -1")

    def bpart(self, BF, XF, S4, VZ, VG, G):
        A = self.A
        T0, T1, T2 = 16, 17, 18
        self.srd(52, 34, 1024)
        A("s_lshl_b32 s7, s2, 5")
        A(f"v_lshlrev_b32 v{T0}, 1, v1")
        A(f"buffer_load_ushort v{XF}, v{T0}, s[44:47], s7 offen")
        A(f"buffer_load_ushort v{S4}, v{T0}, s[52:55], s7 offen")
        self.wait_trigger(VZ, T1, 10)
        self.check_flags(T1, T2, 10)
        A(f"s_lshl_b32 s7, s2, 6"); A(f"s_add_u32 s7, s7, {W_PART + 256*2048}")
        for r in range(4): A(f"v_mov_b32 v{G+r}, 0")
        A(f"s_mov_b32 exec_hi, {(1 << (NFFN*4 - 32)) - 1}")
        lp = self.newlab("L_bg"); lpd = self.newlab("L_bgd")
        A("s_mov_b32 s10, 0")
        self.lab(lp)
        A(f"buffer_load_dwordx4 v[{G}:{G+3}], v{VG}, s[64:67], s7 offen sc1")
        A("s_waitcnt vmcnt(0)")
        A(f"v_max3_u32 v{T1}, v{G}, v{G+1}, v{G+2}")
        A(f"v_max_u32 v{T1}, v{T1}, v{G+3}")
        A(f"v_cmp_eq_u32 vcc, -1, v{T1}")
        A("s_add_u32 s10, s10, 1")
        A(f"s_cmp_ge_u32 s10, {SPIN_MAX}"); A(f"s_cbranch_scc1 {lpd}")
        A(f"s_cbranch_vccz {lpd}")
        A("s_sleep 64")
        A(f"s_branch {lp}")
        self.lab(lpd)
        A("s_mov_b32 exec_hi, -1")
        self.quad_col_reduce(G, G + 4)
        A(f"v_lshlrev_b32 v{T0}, 4, v0")
        A("s_mov_b64 exec, 0xf")
        A(f"ds_write_b128 v{T0}, v[{G}:{G+3}] offset:{L_FIN+256}")
        A("s_mov_b64 exec, -1")
        A(f"v_lshlrev_b32 v{T0}, 2, v1")
        A("s_waitcnt lgkmcnt(0)")
        A(f"ds_read_b32 v{BF}, v{T0} offset:{L_FIN+256}")
        A(f"v_lshlrev_b32 v{XF}, 16, v{XF}")
        A(f"v_lshlrev_b32 v{S4}, 16, v{S4}")
        A("s_waitcnt lgkmcnt(0)")
        self.rnd_bf16(BF, BF)
        A(f"v_add_f32 v{BF}, v{BF}, v{S4}")
        self.rnd_bf16(BF, BF)

    def ffn(self, WB, XD, VZ, VO, VL, VD, ACC, ACC2, G):
        A = self.A
        T0, T1, T2 = 16, 17, 18
        pace = self.pace
        self.srd(48, 28, 512 * 3584 if "now12" not in self.dbg else 0)
        self.srd(52, 30, 3584)
        self.srd(56, 32, 1792 * 1024 if "now12" not in self.dbg else 0)
        A("s_lshl_b32 s7, s10, 8")
        A(f"v_lshrrev_b32 v{T0}, 1, v{VD}")
        A(f"buffer_load_ushort v{G+8}, v{T0}, s[52:55], s7 offen")
        A(f"buffer_load_ushort v{G+9}, v{T0}, s[52:55], s7 offen offset:128")
        A(f"s_mul_i32 s8, s9, {128*3584}"); A("s_add_u32 s7, s7, s8")
        A(f"v_mul_u32_u24 v{VO}, 3584, v2"); A(f"v_lshlrev_b32 v{T2}, 4, v1"); A(f"v_add3_u32 v{VO}, v{VO}, v{T2}, s7")
        self.wloads(WB, VO, 48, 14336, pace=pace)
        self.diag_mfmas(32, lambda j: XD + j // 16, WB, ACC, 31)
        A(f"s_lshl_b32 s7, s9, 9")
        A(f"v_add_u32 v{T0}, s7, v{VL}")
        A(f"v_mov_b32 v{T1}, 1")
        A("s_mov_b32 exec_hi, 0")
        self.nop(6)
        A(f"ds_write_b128 v{T0}, v[{ACC}:{ACC+3}] offset:{L_FS}")
        A("s_mov_b64 exec, 1")
        A(f"ds_add_u32 v{VZ}, v{T1} offset:{L_FC}")
        A("s_mov_b64 exec, -1")
        A("s_lshl_b32 s7, s10, 17"); A("s_lshl_b32 s8, s9, 8"); A("s_add_u32 s7, s7, s8")
        A(f"v_lshlrev_b32 v{VO}, 10, v2"); A(f"v_lshlrev_b32 v{T2}, 4, v1"); A(f"v_add3_u32 v{VO}, v{VO}, v{T2}, s7")
        self.wloads(WB, VO, 56, 4096, pace=pace)
        l0 = self.newlab("L_fc"); l1 = self.newlab("L_fcd")
        A("s_mov_b32 s11, 0")
        self.lab(l0)
        A(f"ds_read_b32 v{T1}, v{VZ} offset:{L_FC}")
        A("s_waitcnt lgkmcnt(0)")
        A(f"v_cmp_ne_u32 vcc, 4, v{T1}")
        A("s_add_u32 s11, s11, 1")
        A(f"s_cmp_ge_u32 s11, {SPIN_MAX*20}"); A(f"s_cbranch_scc1 {l1}")
        A(f"s_cbranch_vccz {l1}")
        A("s_sleep 8")
        A(f"s_branch {l0}")
        self.lab(l1)
        for w in range(4):
            A(f"ds_read_b32 v{G+2*w}, v{VD} offset:{L_FS+512*w}")
            A(f"ds_read_b32 v{G+2*w+1}, v{VD} offset:{L_FS+512*w+256}")
        A("s_waitcnt lgkmcnt(0)")
        HP = G + 10
        for i in range(2):
            A(f"v_add_f32 v{G+i}, v{G+i}, v{G+2+i}"); A(f"v_add_f32 v{G+4+i}, v{G+4+i}, v{G+6+i}")
            A(f"v_add_f32 v{G+i}, v{G+i}, v{G+4+i}")
            self.rnd_bf16(G + i, G + i)
            A(f"v_lshlrev_b32 v{G+8+i}, 16, v{G+8+i}")
            A(f"v_add_f32 v{G+i}, v{G+i}, v{G+8+i}")
            self.rnd_bf16(G + i, G + i)
            A(f"v_cmp_lt_f32 vcc, 0, v{G+i}"); self.nop(2)
            A(f"v_cndmask_b32 v{G+i}, 0, v{G+i}, vcc")
            A(f"v_mul_f32 v{G+i}, v{G+i}, v{G+i}")
            A(f"v_cvt_pk_bf16_f32 v{HP+i}, v{G+i}, v{G+i}")
        self.check_flags(T1, T2, 11)
        self.diag_mfmas(32, lambda j: HP + j // 16, WB, ACC, None)
        self.nop(8)
        for r in range(4): A(f"v_min_u32 v{ACC2+r}, -2, v{ACC+r}")
        A("s_lshl_b32 s7, s10, 11"); A("s_lshl_b32 s8, s9, 9"); A("s_add_u32 s7, s7, s8"); A(f"s_add_u32 s7, s7, {W_PART + 256*2048}")
        A("s_mov_b32 exec_hi, 0")
        A(f"buffer_store_dwordx4 v[{ACC2}:{ACC2+3}], v{VL}, s[64:67], s7 offen sc1")
        A("s_mov_b32 exec_hi, -1")
        self.nop(2)

if __name__ == "__main__":
    import argparse
    ap = argparse.ArgumentParser()
    ap.add_argument("out"); ap.add_argument("--D", type=int, default=6); ap.add_argument("--mode", default="slow")
    ap.add_argument("--stamps", action="store_true"); ap.add_argument("--map", default="A"); ap.add_argument("--dbg", default="")
    a = ap.parse_args()
    open(a.out, "w").write(Gen(a.D, a.mode, a.stamps, a.map, a.dbg).build())
```

```python
import sys, struct
KN = "parallel_sum__mha_block_cached__dense_activation_squared_relu__decode"

def f32(x):
    return "0x%08x" % struct.unpack("<I", struct.pack("<f", x))[0]

HEADER = """; Kernarg layout for this problem (104 bytes, ptrs only, base s[0:1]):
;   offset   0: d_in[0] A_x  shape=(1, 1, 512) dtype=bfloat16 strides=(1024, 1024, 2) contiguous=True
;   offset   8: d_in[1] A_k_cache  shape=(1, 32, 65536, 128) dtype=bfloat16 strides=(536870912, 16777216, 256, 2) contiguous=True
;   offset  16: d_in[2] A_v_cache  shape=(1, 32, 65536, 128) dtype=bfloat16 strides=(536870912, 16777216, 256, 2) contiguous=True
;   offset  24: d_in[3] A_wq  shape=(512, 4096) dtype=bfloat16 strides=(8192, 2) contiguous=True
;   offset  32: d_in[4] A_wo  shape=(4096, 512) dtype=bfloat16 strides=(1024, 2) contiguous=True
;   offset  40: d_in[5] B_x  shape=(1, 1, 512) dtype=bfloat16 strides=(1024, 1024, 2) contiguous=True
;   offset  48: d_in[6] B_w1  shape=(512, 1792) dtype=bfloat16 strides=(3584, 2) contiguous=True
;   offset  56: d_in[7] B_b1  shape=(1792,) dtype=bfloat16 strides=(2,) contiguous=True
;   offset  64: d_in[8] B_w2  shape=(1792, 512) dtype=bfloat16 strides=(1024, 2) contiguous=True
;   offset  72: d_in[9] B_b2  shape=(512,) dtype=bfloat16 strides=(2,) contiguous=True
;   offset  80: d_out     shape=(1, 1, 512) dtype=bfloat16 (2 bytes/elem)
;   offset  96: d_ws      2147483648 bytes workspace
"""

DESIGN = """;
; Workgroup = (head, 8192-key slice).  Waves 0-3 stream K then V (non-temporal 1-KiB loads, small in-flight window):
;   K phase: v_dot2 + DPP transposing reduction -> scores (rounded like the reference) kept in LDS, running max / sum
; Hand-offs go through d_ws with write-through stores / sc1 loads; slots are reset to an EMPTY marker at the start of
;   with 16 others and widens its prefetch window when it lags (bandwidth balancing; affects speed only).
"""

L_QP   = 0
L_OP   = 2048
L_ST   = 4096
L_FW   = 4160
L_TR   = 4176
L_FIN  = 4224
L_FC   = 4180
L_CT   = 4184
L_PG   = 4192
L_FS   = 4608
L_SC   = 8192
LDS_BYTES = L_SC + 4 * 8192

W_ST   = 0
W_PG   = 0x8000
W_PART = 0x10000
WS_BYTES = W_PART + 272 * 2048
NFFN = 14
FFN_WG0 = 32
SPIN_MAX = 1000000

LOG2E = 1.4426950408889634
SCALE = 128 ** -0.5

def c_of_tile(i):
    for c in range(16):
        t = (c >> 3) | (((c >> 2) & 1) << 1) | ((c & 1) << 2) | (((c >> 1) & 1) << 3)
        if t == i:
            return c

class Gen:
    def __init__(self, D=6, mode="slow", stamps=False, wgmap="A", dbg=""):
        self.dbg = dbg.split(",")
        self.wpol = " nt" if "wnt" in self.dbg else ""
        self.NPRE = 48
        self.TRIG = 8
        self.pace = 0
        self.wqpace = 0
        self.rot = None
        self.iw = 0; self.pw = 0
        self.spol = "nt"
        self.cap = 0
        self.ppd = 8
        self.nsp = 1; self.dend = D
        self.wopace = None; self.wodelay = 0; self.wopol = None
        self.lo = 1
        self.ctl = "ctl" in self.dbg
        self.c0 = 0; self.gain = 16
        self.miles = [16, 32, 44, 54, 60]
        self.fk = 4 if mode == "fast" else 0
        self.fv = self.fk
        for o in self.dbg:
            if o.startswith("pre"): self.NPRE = int(o[3:])
            if o.startswith("trig"): self.TRIG = int(o[4:])
            if o.startswith("pace"): self.pace = int(o[4:])
            if o.startswith("lo"): self.lo = int(o[2:])
            if o.startswith("c0"): self.c0 = int(o[2:])
            if o.startswith("gain"): self.gain = int(o[4:])
            if o.startswith("ms"): self.miles = [int(x) for x in o[2:].split("-")]
            if o.startswith("wop"): self.wopace = int(o[3:])
            if o.startswith("wod") and o != "wodef": self.wodelay = int(o[3:])
            if o == "wodef": self.wopol = ""
            if o.startswith("nsp"): self.nsp = int(o[3:])
            if o.startswith("dend"): self.dend = int(o[4:])
            if o.startswith("rr"): self.rot = (0x9E3779B1, int(o[2:]) * 1024 - 1)
            if o.startswith("sk"): self.rot = (int(o[2:]) * 1024, 0xffffffff)
            if o.startswith("ppd"): self.ppd = int(o[3:])
            if o.startswith("cap"): self.cap = int(o[3:])
            if o.startswith("sp_"): self.spol = o[3:].replace("_", " ")
            if o.startswith("iw"): self.iw = int(o[2:])
            if o.startswith("pw"): self.pw = int(o[2:])
            if o.startswith("wqp"): self.wqpace = int(o[3:])
            if o.startswith("fk"): self.fk = int(o[2:])
            if o.startswith("fv"): self.fv = int(o[2:])
        self.wgmap = wgmap
        self.L = []
        self.D = D
        self.mode = mode
        self.stamps = stamps
        self.nlab = 0
        if self.wopace is None: self.wopace = self.pace
    def A(self, s):
        self.L.append("  " + s)
    def lab(self, name):
        self.L.append(name + ":")
    def newlab(self, p="L"):
        self.nlab += 1
        return f"{p}_{self.nlab}"
    def nop(self, n):
        while n > 0:
            k = min(n, 16)
            self.A(f"s_nop {k-1}")
            n -= k
    def rnd_bf16(self, d, s):
        self.A(f"v_cvt_pk_bf16_f32 v{d}, v{s}, v{s}")
        self.A(f"v_and_b32 v{d}, 0xffff0000, v{d}")
    def bfly(self, op, v, t, full=True):
        for ctl in ("quad_perm:[1,0,3,2]", "quad_perm:[2,3,0,1]", "row_half_mirror", "row_mirror"):
            self.nop(2)
            self.A(f"{op}_dpp v{v}, v{v}, v{v} {ctl} row_mask:0xf bank_mask:0xf")
        sw = ["v_permlane16_swap_b32"] + (["v_permlane32_swap_b32"] if full else [])
        for s in sw:
            self.A(f"v_mov_b32 v{t}, v{v}")
            self.nop(2)
            self.A(f"{s} v{v}, v{t}")
            self.nop(1)
            self.A(f"{op} v{v}, v{v}, v{t}")
    def srd(self, d, base, nbytes):
        self.A(f"s_mov_b32 s{d}, s{base}")
        self.A(f"s_and_b32 s{d+1}, s{base+1}, 0xffff")
        self.A(f"s_mov_b32 s{d+2}, {nbytes}")
        self.A(f"s_mov_b32 s{d+3}, 0x20000")
    def poll_counter(self, voff, off, target, vt, st, sc):
        l0 = self.newlab("L_poll"); l1 = self.newlab("L_polld")
        self.A(f"s_mov_b32 s{sc}, 0")
        self.lab(l0)
        self.A(f"buffer_load_dword v{vt}, v{voff}, s[60:63], 0 offen offset:{off} sc1")
        self.A("s_waitcnt vmcnt(0)")
        self.A(f"v_readfirstlane_b32 s{st}, v{vt}")
        self.A(f"s_add_u32 s{sc}, s{sc}, 1")
        self.A(f"s_cmp_ge_u32 s{st}, {target}")
        self.A(f"s_cbranch_scc1 {l1}")
        self.A(f"s_cmp_ge_u32 s{sc}, {SPIN_MAX}")
        self.A(f"s_cbranch_scc1 {l1}")
        self.A("s_sleep 64")
        self.A(f"s_branch {l0}")
        self.lab(l1)
    def wait_trigger(self, vz, vt, sc):
        l0 = self.newlab("L_tr"); l1 = self.newlab("L_trd")
        self.A(f"s_mov_b32 s{sc}, 0")
        self.lab(l0)
        self.A(f"ds_read_b32 v{vt}, v{vz} offset:{L_TR}")
        self.A("s_waitcnt lgkmcnt(0)")
        self.A(f"v_cmp_ne_u32 vcc, 1, v{vt}")
        self.A(f"s_add_u32 s{sc}, s{sc}, 1")
        self.A(f"s_cmp_ge_u32 s{sc}, {SPIN_MAX*4}"); self.A(f"s_cbranch_scc1 {l1}")
        self.A(f"s_cbranch_vccz {l1}")
        self.A("s_sleep 32")
        self.A(f"s_branch {l0}")
        self.lab(l1)
    def stamp(self, idx):
        if self.stamps:
            self.A(f"s_memrealtime s[{70+2*idx}:{71+2*idx}]")
    def stamp_out(self, n):
        if not self.stamps: return
        self.A("s_waitcnt lgkmcnt(0)")
        self.A("s_mov_b64 exec, -1")
        self.A("s_lshl_b32 s4, s2, 3"); self.A("s_add_u32 s4, s4, s3"); self.A("s_lshl_b32 s4, s4, 7"); self.A("s_add_u32 s4, s4, 0x100000")
        self.A("v_mov_b32 v1, s4")
        self.A("s_getreg_b32 s5, hwreg(HW_REG_XCC_ID)")
        for i in range(n):
            self.A(f"v_mov_b32 v2, s{70+2*i}"); self.A(f"v_mov_b32 v3, s{71+2*i}")
            self.A(f"global_store_dwordx2 v1, v[2:3], s[40:41] offset:{8*i}")
            self.nop(2)
        self.A("v_mov_b32 v2, s5")
        self.A(f"global_store_dword v1, v2, s[40:41] offset:120")

    def build(self):
        A = self.A; D = self.D
        self.L.append(HEADER.rstrip("\n"))
        self.L.append(f"; @launch grid=(256,1,1) block=(512,1,1) lds={LDS_BYTES}")
        self.L.append(DESIGN.rstrip("\n"))
        self.L.append('.amdgcn_target "amdgcn-amd-amdhsa--gfx950"')
        self.L.append(".text"); self.L.append(f".globl {KN}_kernel"); self.L.append(".p2align 8")
        self.L.append(f".type {KN}_kernel,@function"); self.L.append(f"{KN}_kernel:")
        A("s_cmp_ge_u32 s2, 256"); A("s_cbranch_scc1 L_end")
        A("s_load_dwordx16 s[16:31], s[0:1], 0")
        A("s_load_dwordx8 s[32:39], s[0:1], 64")
        A("s_load_dwordx2 s[40:41], s[0:1], 96")
        self.stamp(0)
        A("v_lshrrev_b32 v1, 6, v0")
        A("v_and_b32 v0, 63, v0")
        A("v_readfirstlane_b32 s3, v1")
        A("v_and_b32 v1, 15, v0")
        A("v_lshrrev_b32 v2, 4, v0")
        if self.wgmap == "B":
            A("s_and_b32 s4, s2, 7"); A("s_lshl_b32 s4, s4, 2")
            A("s_lshr_b32 s5, s2, 3"); A("s_and_b32 s6, s5, 3"); A("s_add_u32 s4, s4, s6")
            A("s_lshr_b32 s5, s2, 5")
        else:
            A("s_lshr_b32 s4, s2, 3")
            A("s_and_b32 s5, s2, 7")
        A("v_lshrrev_b32 v3, 1, v1")
        A("v_and_b32 v8, 1, v1")
        A("v_mov_b32 v9, 0xffff")
        A("v_lshlrev_b32 v8, 4, v8")
        A("v_lshlrev_b32 v9, v8, v9")
        for k in range(4):
            A(f"v_cmp_eq_u32 vcc, {k}, v3")
            self.nop(2)
            A(f"v_cndmask_b32 v{4+k}, 0, v9, vcc")
        A("s_cmp_ge_u32 s3, 4")
        A("s_cbranch_scc1 L_helper")
        self.stream_wave()
        self.lab("L_helper")
        self.helper_wave()
        self.lab("L_end"); A("s_endpgm")
        self.L.append('.section .rodata,"a"'); self.L.append(".p2align 6"); self.L.append(f".amdhsa_kernel {KN}_kernel")
        A(".amdhsa_next_free_vgpr 256"); A(".amdhsa_next_free_sgpr 100"); A(".amdhsa_accum_offset 256")
        A(".amdhsa_group_segment_fixed_size 0"); A(".amdhsa_kernarg_size 104"); A(".amdhsa_user_sgpr_count 2")
        A(".amdhsa_user_sgpr_kernarg_segment_ptr 1"); A(".amdhsa_system_sgpr_workgroup_id_x 1")
        self.L.append(".end_amdhsa_kernel")
        return "\n".join(self.L) + "\n"

    def stream_wave(self):
        A = self.A; D = self.D
        VOFF = 10; Q = 12
        RB = 64
        P = 32
        T0, T1 = 16, 17
        M, LS = 18, 19
        SCA = 20
        PK = 21; SN = 22
        AA = (24, 28)
        ACC = 48
        TQ = 52
        if "noprio" not in self.dbg: A("s_setprio 2")
        A("s_waitcnt lgkmcnt(0)")
        A("s_lshl_b32 s6, s4, 24"); A("s_lshl_b32 s7, s5, 21"); A("s_add_u32 s6, s6, s7")
        for sd, sb in ((44, 18), (48, 20)):
            A(f"s_add_u32 s{sd}, s{sb}, s6"); A(f"s_addc_u32 s{sd+1}, s{sb+1}, 0"); A(f"s_and_b32 s{sd+1}, s{sd+1}, 0xffff")
            A(f"s_mov_b32 s{sd+2}, 0x200000"); A(f"s_mov_b32 s{sd+3}, 0x20000")
        A("s_lshl_b32 s7, s3, 10")
        A(f"v_lshlrev_b32 v{VOFF}, 4, v0"); A(f"v_add_u32 v{VOFF}, s7, v{VOFF}")
        if self.rot:
            mul, mask = self.rot
            A(f"s_mul_i32 s52, s2, {mul}"); A(f"s_and_b32 s52, s52, {mask & 0x1ff000}")
            A("s_mov_b32 s8, s52")
        else:
            A("s_mov_b32 s8, 0")
        NPRE = self.NPRE
        def slot_reg(k):
            if k < 16 or k >= NPRE: return RB + 4 * (k % 16)
            return 128 + 4 * (k - 16)
        def load(k, srd, reg=None):
            b = RB + 4 * (k % 16) if reg is None else reg
            A(f"buffer_load_dwordx4 v[{b}:{b+3}], v{VOFF}, s[{srd}:{srd+3}], s8 offen {self.spol}")
            A("s_add_u32 s8, s8, 4096")
            if self.rot: A("s_and_b32 s8, s8, 0x1fffff")
        DW = D - self.lo if self.mode == "slow" else D
        IW = max(DW, self.iw)
        for i in range(min(NPRE, IW)): load(i, 44, slot_reg(i))
        A("s_mov_b32 s10, 0xaaaaaaaa"); A("s_mov_b32 s11, 0xaaaaaaaa")
        A("s_mov_b32 s12, 0xcccccccc"); A("s_mov_b32 s13, 0xcccccccc")
        A(f"s_mov_b32 s14, {f32(SCALE)}"); A(f"s_mov_b32 s15, {f32(LOG2E)}")
        A(f"v_mov_b32 v{M}, 0xff7fffff"); A(f"v_mov_b32 v{LS}, 0")
        A(f"s_lshl_b32 s7, s3, 13"); A(f"s_add_u32 s7, s7, {L_SC}")
        A(f"v_lshlrev_b32 v{SCA}, 2, v0"); A(f"v_add_u32 v{SCA}, s7, v{SCA}")
        for r in range(4): A(f"v_mov_b32 v{ACC+r}, 0")
        A(f"v_lshlrev_b32 v{T0}, 5, v1")
        def set_mode(nfast):
            A(f"s_cmp_lt_u32 s3, {nfast}"); A("s_cselect_b64 vcc, -1, 0")
        set_mode(self.fk)
        for i in range(IW, NPRE):
            A(f"s_waitcnt vmcnt({(self.pw or DW)-1})")
            load(i, 44, slot_reg(i))
        self.stamp(4)
        A("s_barrier")
        self.stamp(1)
        tq = list(range(P, P + 16)) + list(range(TQ, TQ + 12)) + list(range(AA[0], AA[0] + 4))
        for h in range(4):
            for hf in range(2):
                r = tq[8 * h + 4 * hf]
                A(f"ds_read_b128 v[{r}:{r+3}], v{T0} offset:{L_QP+512*h+16*hf}")
        A("s_waitcnt lgkmcnt(0)")
        for e in range(8):
            A(f"v_add_f32 v{tq[e]}, v{tq[e]}, v{tq[8+e]}")
            A(f"v_add_f32 v{tq[16+e]}, v{tq[16+e]}, v{tq[24+e]}")
        for e in range(8):
            A(f"v_add_f32 v{tq[e]}, v{tq[e]}, v{tq[16+e]}")
        for k in range(4):
            A(f"v_cvt_pk_bf16_f32 v{Q+k}, v{tq[2*k]}, v{tq[2*k+1]}")
        def wait_tile(n):
            A(f"s_waitcnt vmcnt({n})")
        def mode_wait():
            l = self.newlab("L_m")
            A(f"s_cbranch_vccnz {l}")
            A(f"s_waitcnt vmcnt({D-1-self.lo})")
            self.lab(l)
        VPG, VCT, VZ0 = 23, 11, 9
        def ctl_top(wait=True):
            if wait: A("s_waitcnt lgkmcnt(0)")
            A(f"v_readfirstlane_b32 s43, v{VCT}")
            A(f"v_mov_b32 v{T0}, s42")
            A(f"ds_write_b32 v{VPG}, v{T0}")
            A(f"ds_read_b32 v{VCT}, v{VZ0} offset:{L_CT}")
            A("s_cmp_lt_u32 s42, s43"); A("s_cselect_b64 vcc, -1, 0")
            A("s_add_u32 s42, s42, 1")
        def dots(i, reg=None):
            b = RB + 4 * i if reg is None else reg
            if "nok" in self.dbg: return
            A(f"v_dot2_f32_bf16 v{P+i}, v{b}, v{Q}, 0")
            for k in range(1, 4):
                A(f"v_dot2_f32_bf16 v{P+i}, v{b+k}, v{Q+k}, v{P+i}")
        def l1(a, b):
            A(f"v_add_f32_dpp v{P+a}, v{P+a}, v{P+a} row_ror:8 row_mask:0xf bank_mask:0x3")
            A(f"v_add_f32_dpp v{P+a}, v{P+b}, v{P+b} row_ror:8 row_mask:0xf bank_mask:0xc")
        def l2(a, b):
            A(f"v_add_f32_dpp v{P+a}, v{P+a}, v{P+a} row_half_mirror row_mask:0xf bank_mask:0x5")
            A(f"v_add_f32_dpp v{P+a}, v{P+b}, v{P+b} row_half_mirror row_mask:0xf bank_mask:0xa")
        def l34(a, b, sm, qp):
            A(f"v_cndmask_b32 v{T0}, v{P+b}, v{P+a}, s[{sm}:{sm+1}]")
            A(f"v_cndmask_b32 v{T1}, v{P+a}, v{P+b}, s[{sm}:{sm+1}]")
            self.nop(2)
            A(f"v_add_f32_dpp v{P+a}, v{T0}, v{T1} quad_perm:{qp} row_mask:0xf bank_mask:0xf")
        def combos_after(i):
            if "nok" in self.dbg: return
            if i >= 2 and i % 2 == 0: l1(i - 2, i - 1)
            if i >= 5 and i % 4 == 1: l2(i - 5, i - 3)
            if i == 11: l34(0, 4, 10, "[1,0,3,2]")
        def finish_iter():
            self.nop(3)
            l1(14, 15)
            self.nop(2)
            l2(12, 14)
            self.nop(1)
            l34(8, 12, 10, "[1,0,3,2]")
            self.nop(1)
            l34(0, 8, 12, "[2,3,0,1]")
            S = P
            if "noround" not in self.dbg: self.rnd_bf16(S, S)
            A(f"v_mul_f32 v{S}, s14, v{S}")
            if "noround" not in self.dbg: self.rnd_bf16(S, S)
            A(f"ds_write_b32 v{SCA}, v{S}")
            A(f"v_add_u32 v{SCA}, 256, v{SCA}")
            A(f"v_max_f32 v{T0}, v{M}, v{S}")
            A(f"v_sub_f32 v{T1}, v{M}, v{T0}")
            A(f"v_sub_f32 v{S}, v{S}, v{T0}")
            A(f"v_mul_f32 v{T1}, s15, v{T1}")
            A(f"v_mul_f32 v{S}, s15, v{S}")
            A(f"v_exp_f32 v{T1}, v{T1}")
            A(f"v_exp_f32 v{S}, v{S}")
            A(f"v_mov_b32 v{M}, v{T0}")
            A(f"v_fma_f32 v{LS}, v{LS}, v{T1}, v{S}")
        NCU = NPRE + 16
        issued = NPRE
        last_issue = NCU + D
        ratio = NPRE // 16
        for t in range(NCU):
            need = issued - 1 - t
            wait_tile(min(need, 63))
            dots(t % 16, slot_reg(t))
            combos_after(t % 16)
            if t % 16 == 15: finish_iter()
            want = False
            if t < NPRE:
                want = (t % ratio == ratio - 1)
            else:
                k = issued - NCU
                want = (t - NPRE + 1) * D >= (k + 1) * 16
            while want and issued < last_issue:
                assert issued - 16 <= t if issued >= NCU else (issued % 16) <= t
                A(f"s_waitcnt vmcnt({DW-1})")
                load(issued, 44); issued += 1
                want = False
        assert issued == last_issue, (issued, last_issue)
        A(f"s_mov_b32 s9, {31 - NCU // 16}")
        if True:
            A(f"s_mov_b32 s42, {NCU // 16}")
            A(f"v_mov_b32 v{VCT}, 0"); A(f"v_mov_b32 v{VZ0}, 0")
            A(f"s_lshl_b32 s7, s3, 2"); A(f"s_add_u32 s7, s7, {L_PG}"); A(f"v_mov_b32 v{VPG}, s7")
        self.lab("L_kloop")
        ctl_top()
        for i in range(16):
            wait_tile(D - 1); mode_wait(); load(i + D, 44); dots(i); combos_after(i)
        finish_iter()
        A("s_sub_u32 s9, s9, 1"); A("s_cmp_lg_u32 s9, 0"); A("s_cbranch_scc1 L_kloop")
        ctl_top()
        for i in range(16):
            wait_tile(D - 1); mode_wait()
            if i + D == 16 and not self.rot: A("s_mov_b32 s8, 0")
            load(i + D, 44 if i + D < 16 else 48); dots(i); combos_after(i)
        finish_iter()
        self.stamp(2)
        A(f"v_subrev_u32 v{SCA}, 8192, v{SCA}")
        A(f"ds_read_b32 v{SN}, v{SCA}")
        A(f"v_mov_b32 v{P}, v{M}")
        self.bfly("v_max_f32", P, T0)
        A(f"v_sub_f32 v{T1}, v{M}, v{P}")
        A(f"v_mul_f32 v{T1}, s15, v{T1}")
        A(f"v_exp_f32 v{T1}, v{T1}")
        A(f"v_mov_b32 v{M}, v{P}")
        A(f"v_mul_f32 v{P+1}, v{LS}, v{T1}")
        self.bfly("v_add_f32", P + 1, T0)
        A(f"v_mov_b32 v{P+2}, 1"); A(f"v_mov_b32 v{P+3}, 0")
        A(f"s_lshl_b32 s7, s3, 4"); A(f"s_add_u32 s7, s7, {L_ST}"); A(f"v_mov_b32 v{T0}, s7")
        A("s_mov_b64 exec, 1")
        A(f"ds_write_b128 v{T0}, v[{P}:{P+3}]")
        A("s_mov_b64 exec, -1")
        NSP = self.nsp
        st = {"issued": D}
        def v_iter(last, sp=None):
            A("s_waitcnt lgkmcnt(0)")
            if sp is None: ctl_top(False)
            A(f"v_sub_f32 v{PK}, v{SN}, v{M}")
            A(f"v_mul_f32 v{PK}, s15, v{PK}")
            A(f"v_exp_f32 v{PK}, v{PK}")
            if not last:
                A(f"v_add_u32 v{SCA}, 256, v{SCA}")
                A(f"ds_read_b32 v{SN}, v{SCA}")
            else:
                self.nop(1)
            A(f"v_cvt_pk_bf16_f32 v{PK}, v{PK}, v{PK}")
            self.nop(2)
            for i in range(16):
                a = AA[i % 2]
                for k in range(4 if "nov" not in self.dbg else 0):
                    A(f"v_and_b32_dpp v{a+k}, v{PK}, v{4+k} row_newbcast:{c_of_tile(i)} row_mask:0xf bank_mask:0xf")
                if sp is None:
                    wait_tile(D - 1); mode_wait(); load(i + D, 48)
                else:
                    t = sp * 16 + i
                    wait_tile(st["issued"] - 1 - t)
                    n = 0
                    while st["issued"] < NSP * 16 and st["issued"] - t <= self.dend and st["issued"] - 16 < t and n < 2:
                        if self.dend <= D and n == 0: mode_wait()
                        load(st["issued"], 48); st["issued"] += 1; n += 1
                        if self.dend <= D: break
                    if n == 0: self.nop(1)
                b = RB + 4 * i
                if "nov" not in self.dbg and "nomfma" not in self.dbg:
                    A(f"v_mfma_f32_16x16x32_bf16 v[{ACC}:{ACC+3}], v[{a}:{a+3}], v[{b}:{b+3}], v[{ACC}:{ACC+3}]")
        A(f"s_mov_b32 s9, {32 - NSP}")
        self.lab("L_vloop")
        v_iter(False)
        A(f"s_cmp_lg_u32 s9, {self.TRIG - NSP + 1}"); A("s_cbranch_scc1 L_notrig")
        A(f"v_mov_b32 v{T0}, {L_TR}"); A(f"v_mov_b32 v{T1}, 1")
        A(f"ds_write_b32 v{T0}, v{T1}")
        self.lab("L_notrig")
        A("s_sub_u32 s9, s9, 1"); A("s_cmp_lg_u32 s9, 0"); A("s_cbranch_scc1 L_vloop")
        A(f"s_lshl_b32 s7, s3, 9"); A(f"s_add_u32 s7, s7, {L_OP}")
        A(f"v_lshlrev_b32 v{T0}, 5, v1"); A(f"v_lshlrev_b32 v{T1}, 4, v2"); A(f"v_add3_u32 v{T0}, v{T0}, v{T1}, s7")
        for sp in range(NSP): v_iter(sp == NSP - 1, sp)
        assert st["issued"] == NSP * 16
        A("s_mov_b32 exec_hi, 0")
        self.nop(8)
        A(f"ds_write_b128 v{T0}, v[{ACC}:{ACC+3}]")
        A("s_waitcnt lgkmcnt(0)")
        A("s_barrier")
        self.stamp(3)
        self.stamp_out(5)
        A("s_endpgm")

    def diag_mfmas(self, n, pk_of, wb, acc, waitbase, first_zero=True, hilo=False, sel=None, tb=None):
        A = self.A
        AA = (24, 28)
        def build(j):
            a = AA[j % 2]
            if not hilo:
                for k in range(4):
                    A(f"v_and_b32_dpp v{a+k}, v{pk_of(j)}, v{4+k} row_newbcast:{j%16} row_mask:0xf bank_mask:0xf")
            else:
                A(f"v_mov_b32_dpp v{tb}, v{pk_of(j)} row_newbcast:{j%16} row_mask:0xf bank_mask:0xf")
                for k in range(4):
                    A(f"v_perm_b32 v{a+k}, v{tb}, v{tb}, v{sel+k}")
        build(0)
        for j in range(n):
            if j + 1 < n: build(j + 1)
            else: self.nop(2)
            if waitbase is not None: A(f"s_waitcnt vmcnt({waitbase - j})")
            a = AA[j % 2]; b = wb + 4 * j
            c = "0" if (j == 0 and first_zero) else f"v[{acc}:{acc+3}]"
            A(f"v_mfma_f32_16x16x32_bf16 v[{acc}:{acc+3}], v[{a}:{a+3}], v[{b}:{b+3}], {c}")

    def check_flags(self, vt, va, sc):
        A = self.A
        l0 = self.newlab("L_fl"); l1 = self.newlab("L_fld")
        A(f"v_and_b32 v{va}, 31, v0"); A(f"v_lshlrev_b32 v{va}, 2, v{va}")
        A(f"s_mov_b32 s{sc}, 0")
        self.lab(l0)
        A(f"buffer_load_dword v{vt}, v{va}, s[60:63], 0 offen sc1")
        A("s_waitcnt vmcnt(0)")
        A(f"v_cmp_eq_u32 vcc, 0, v{vt}")
        A(f"s_add_u32 s{sc}, s{sc}, 1")
        A(f"s_cmp_ge_u32 s{sc}, {SPIN_MAX}"); A(f"s_cbranch_scc1 {l1}")
        A(f"s_cbranch_vccz {l1}")
        A("s_sleep 64")
        A(f"s_branch {l0}")
        self.lab(l1)

    def wloads(self, WB, VO, srd, step, imm=0, pace=0):
        A = self.A
        A("s_mov_b32 s8, 0")
        for j in range(32):
            o = f" offset:{imm}" if imm else ""
            A(f"buffer_load_dwordx4 v[{WB+4*j}:{WB+4*j+3}], v{VO}, s[{srd}:{srd+3}], s8 offen{o}{self.wpol}")
            if j < 31: A(f"s_add_u32 s8, s8, {step}")
            if pace: A(f"s_waitcnt vmcnt({pace-1})")

    def helper_wave(self):
        A = self.A
        WB = 128
        XV = 32
        XD = 44
        T0, T1, T2 = 16, 17, 18
        MEAN, RS = 19, 20
        VZ = 21
        VO = 22
        VL = 23
        VD = 46
        VM = 48
        ACC = 52
        SEL = 56
        ACC2 = 60
        G = 64
        A("s_sub_u32 s9, s3, 4")
        A("s_waitcnt lgkmcnt(0)")
        self.stamp(9)
        self.srd(44, 16, 1024)
        self.srd(48, 22, 512 * 8192 if "nowq" not in self.dbg else 0)
        A(f"v_lshlrev_b32 v{T0}, 4, v0")
        A(f"buffer_load_dwordx4 v[{XV}:{XV+3}], v{T0}, s[44:47], 0 offen")
        A(f"v_lshlrev_b32 v{VD}, 2, v1"); A(f"v_add_u32 v{VD}, v{VD}, v2"); A(f"v_lshlrev_b32 v{T1}, 1, v{VD}")
        A("s_lshl_b32 s7, s9, 8")
        A(f"buffer_load_ushort v{XD}, v{T1}, s[44:47], s7 offen")
        A(f"buffer_load_ushort v{XD+1}, v{T1}, s[44:47], s7 offen offset:128")
        A("s_lshl_b32 s7, s4, 8"); A("s_lshl_b32 s8, s9, 20"); A("s_add_u32 s7, s7, s8")
        A(f"v_lshlrev_b32 v{VO}, 13, v2"); A(f"v_lshlrev_b32 v{T2}, 4, v1"); A(f"v_add3_u32 v{VO}, v{VO}, v{T2}, s7")
        self.wloads(WB, VO, 48, 32768, pace=self.wqpace)
        self.srd(60, 38, 256)
        self.srd(64, 40, WS_BYTES)
        self.srd(52, 40, WS_BYTES)
        A("s_cmp_lt_u32 s2, 32"); A(f"s_cselect_b32 s54, {WS_BYTES if 'noinit' not in self.dbg else W_PART}, 0")
        for r in range(4): A(f"v_mov_b32 v{VM+r}, -1")
        A("s_lshl_b32 s7, s2, 14"); A("s_lshl_b32 s8, s9, 12"); A("s_add_u32 s7, s7, s8"); A(f"s_add_u32 s7, s7, {W_PART}")
        for k in range(4):
            A(f"buffer_store_dwordx4 v[{VM}:{VM+3}], v{T0}, s[52:55], s7 offen offset:{1024*k} sc1")
        A("s_lshl_b32 s7, s2, 11"); A("s_lshl_b32 s8, s9, 10"); A("s_add_u32 s7, s7, s8"); A(f"s_add_u32 s7, s7, {W_PART + 256*2048 - 1024}")
        A(f"s_cmp_lt_u32 s2, {NFFN}"); A(f"s_cselect_b32 s7, s7, {WS_BYTES}")
        A("s_lshl_b32 s8, s2, 10"); A(f"s_add_u32 s8, s8, {W_PG}")
        A("s_cmp_eq_u32 s9, 3"); A(f"s_cselect_b32 s7, s8, s7")
        A("s_cmp_eq_u32 s9, 0"); A(f"s_cselect_b32 s7, {WS_BYTES}, s7")
        A(f"buffer_store_dwordx4 v[{VM}:{VM+3}], v{T0}, s[52:55], s7 offen sc1")
        NS = 5
        A(f"v_mov_b32 v{VZ}, 0")
        A(f"v_lshlrev_b32 v{VD}, 2, v{VD}")
        A(f"v_lshlrev_b32 v{VL}, 5, v1"); A(f"v_and_b32 v{T1}, 1, v2"); A(f"v_lshlrev_b32 v{T1}, 4, v{T1}"); A(f"v_add_u32 v{VL}, v{VL}, v{T1}")
        A(f"v_lshlrev_b32 v{T2}, 2, v0")
        A("s_mov_b32 exec_hi, 0")
        A(f"ds_write_b32 v{T2}, v{VZ} offset:{L_ST}")
        A("s_mov_b64 exec, -1")
        self.stamp(10)
        A(f"s_waitcnt vmcnt({34+NS})")
        self.stamp(11)
        U = XV + 4
        for k in range(4):
            A(f"v_lshlrev_b32 v{U+2*k}, 16, v{XV+k}")
            A(f"v_and_b32 v{U+2*k+1}, 0xffff0000, v{XV+k}")
        A(f"v_add_f32 v{MEAN}, v{U}, v{U+1}")
        for e in range(2, 8): A(f"v_add_f32 v{MEAN}, v{MEAN}, v{U+e}")
        self.bfly("v_add_f32", MEAN, T0)
        A(f"v_mul_f32 v{MEAN}, {f32(1.0/512)}, v{MEAN}")
        for e in range(8): A(f"v_sub_f32 v{U+e}, v{U+e}, v{MEAN}")
        A(f"v_mul_f32 v{RS}, v{U}, v{U}")
        for e in range(1, 8): A(f"v_fmac_f32 v{RS}, v{U+e}, v{U+e}")
        self.bfly("v_add_f32", RS, T0)
        A(f"v_mul_f32 v{RS}, {f32(1.0/512)}, v{RS}")
        self.rnd_bf16(MEAN, MEAN)
        self.rnd_bf16(RS, RS)
        A(f"v_add_f32 v{RS}, {f32(1e-5)}, v{RS}")
        self.rnd_bf16(RS, RS)
        A(f"v_sqrt_f32 v{RS}, v{RS}")
        self.nop(1)
        self.rnd_bf16(RS, RS)
        A(f"v_rcp_f32 v{RS}, v{RS}")
        def xn_pack(r):
            A(f"v_lshlrev_b32 v{r}, 16, v{r}")
            A(f"v_sub_f32 v{r}, v{r}, v{MEAN}")
            self.rnd_bf16(r, r)
            A(f"v_mul_f32 v{r}, v{r}, v{RS}")
            A(f"v_cvt_pk_bf16_f32 v{r}, v{r}, v{r}")
        self.stamp(12)
        A(f"s_waitcnt vmcnt({32+NS})")
        xn_pack(XD); xn_pack(XD + 1)
        self.nop(2)
        self.stamp(7)
        self.diag_mfmas(32, lambda j: XD + j // 16, WB, ACC, 31 + NS)
        A(f"s_lshl_b32 s7, s9, 9")
        A(f"v_add_u32 v{T0}, s7, v{VL}")
        A("s_mov_b32 exec_hi, 0")
        self.nop(6)
        A(f"ds_write_b128 v{T0}, v[{ACC}:{ACC+3}] offset:{L_QP}")
        A("s_mov_b32 exec_hi, -1")
        self.stamp(8)
        A("s_waitcnt vmcnt(0) lgkmcnt(0)")
        A("s_barrier")
        self.stamp(1)
        lskip = self.newlab("L_noflag")
        A("s_cmp_ge_u32 s2, 32"); A(f"s_cbranch_scc1 {lskip}")
        A("s_cmp_lg_u32 s9, 0"); A(f"s_cbranch_scc1 {lskip}")
        A(f"v_mov_b32 v{T1}, 1"); A("s_lshl_b32 s7, s2, 2")
        A("s_mov_b64 exec, 1")
        A(f"buffer_store_dword v{T1}, v{VZ}, s[60:63], s7 offen sc1")
        A("s_mov_b64 exec, -1")
        self.lab(lskip)
        lnf = self.newlab("L_noffn")
        A(f"s_sub_u32 s10, s2, {FFN_WG0}"); A(f"s_cmp_ge_u32 s10, {NFFN}"); A(f"s_cbranch_scc1 {lnf}")
        if "noffn" not in self.dbg: self.ffn(WB, XD, VZ, VO, VL, VD, ACC, ACC2, G)
        self.lab(lnf)
        self.srd(48, 24, 4096 * 1024 if "nowo" not in self.dbg else 0)
        A("s_lshl_b32 s7, s4, 17"); A("s_lshl_b32 s8, s9, 8"); A("s_add_u32 s7, s7, s8")
        A(f"v_lshlrev_b32 v{VO}, 10, v2"); A(f"v_lshlrev_b32 v{T2}, 4, v1"); A(f"v_add3_u32 v{VO}, v{VO}, v{T2}, s7")
        if self.wodelay:
            l0 = self.newlab("L_wd"); l1 = self.newlab("L_wdd")
            A("s_mov_b32 s10, 0")
            self.lab(l0)
            A(f"ds_read_b32 v{T0}, v{VZ} offset:{L_PG}")
            A("s_waitcnt lgkmcnt(0)")
            A(f"v_readfirstlane_b32 s8, v{T0}")
            A("s_add_u32 s10, s10, 1")
            A(f"s_cmp_ge_u32 s10, {SPIN_MAX*4}"); A(f"s_cbranch_scc1 {l1}")
            A(f"s_cmp_ge_u32 s8, {self.wodelay}"); A(f"s_cbranch_scc1 {l1}")
            A("s_sleep 12")
            A(f"s_branch {l0}")
            self.lab(l1)
        savepol = self.wpol
        if self.wopol is not None: self.wpol = self.wopol
        self.wloads(WB, VO, 48, 4096, pace=self.wopace)
        self.wpol = savepol
        A(f"v_mov_b32 v{T0}, 0x0100"); A(f"v_mov_b32 v{T1}, 0x0302")
        A("v_cmp_gt_u32 vcc, 8, v1"); self.nop(2)
        A(f"v_cndmask_b32 v{T0}, v{T1}, v{T0}, vcc")
        A(f"v_lshlrev_b32 v{T1}, 16, v{T0}"); A(f"v_or_b32 v{T0}, v{T0}, v{T1}")
        A(f"v_and_b32 v{T1}, 7, v1"); A(f"v_lshrrev_b32 v{T2}, 1, v{T1}")
        A(f"v_and_b32 v{T1}, 1, v1"); A(f"v_lshlrev_b32 v{T1}, 4, v{T1}")
        A(f"v_mov_b32 v{ACC2}, 0xffff"); A(f"v_lshlrev_b32 v{T1}, v{T1}, v{ACC2}")
        A(f"v_mov_b32 v{ACC2}, 0x0c0c0c0c")
        A(f"v_bfi_b32 v{T0}, v{T1}, v{T0}, v{ACC2}")
        for k in range(4):
            A(f"v_cmp_eq_u32 vcc, {k}, v{T2}"); self.nop(2)
            A(f"v_cndmask_b32 v{SEL+k}, v{ACC2}, v{T0}, vcc")
        VG = 47
        A(f"v_lshrrev_b32 v{VG}, 2, v0"); A(f"v_lshlrev_b32 v{VG}, 11, v{VG}")
        A(f"v_and_b32 v{T0}, 3, v0"); A(f"v_lshlrev_b32 v{T0}, 4, v{T0}"); A(f"v_add_u32 v{VG}, v{VG}, v{T0}")
        lns = self.newlab("L_nosync")
        A("s_cmp_lg_u32 s9, 0"); A(f"s_cbranch_scc1 {lns}")
        self.sync_wave(VZ, G)
        self.lab(lns)
        BF, XF = 34, 35
        lnb = self.newlab("L_nob")
        A("s_cmp_lg_u32 s9, 1"); A(f"s_cbranch_scc1 {lnb}")
        A("s_cmp_ge_u32 s2, 32"); A(f"s_cbranch_scc1 {lnb}")
        if "noffn" not in self.dbg: self.bpart(BF, XF, ACC2, VZ, VG, G)
        self.lab(lnb)
        A("s_lshl_b32 s7, s2, 11"); A("s_lshl_b32 s8, s9, 9"); A("s_add_u32 s7, s7, s8"); A(f"s_add_u32 s7, s7, {W_PART}")
        A("s_lshl_b32 s12, s9, 17"); A("s_lshl_b32 s8, s2, 6"); A("s_add_u32 s12, s12, s8"); A(f"s_add_u32 s12, s12, {W_PART}")
        for k in range(1, 4): A(f"s_add_u32 s{12+k}, s12, {32768*k}")
        A("s_waitcnt vmcnt(0) lgkmcnt(0)")
        self.stamp(2)
        A("s_barrier")
        self.stamp(3)
        if "notail" in self.dbg: A("s_endpgm")
        OP = 36
        FW = ACC2
        A(f"ds_read_b128 v[{FW}:{FW+3}], v{VZ} offset:{L_FW}")
        for w in range(4):
            A(f"ds_read_b32 v{OP+2*w}, v{VD} offset:{L_OP+512*w}")
            A(f"ds_read_b32 v{OP+2*w+1}, v{VD} offset:{L_OP+512*w+256}")
        A("s_waitcnt lgkmcnt(0)")
        for i in range(2):
            A(f"v_mul_f32 v{XD+i}, v{FW}, v{OP+i}")
            for w in range(1, 4): A(f"v_fmac_f32 v{XD+i}, v{FW+w}, v{OP+2*w+i}")
        if "nohilo" in self.dbg:
            for i in range(2): A(f"v_cvt_pk_bf16_f32 v{XD+i}, v{XD+i}, v{XD+i}")
            self.nop(2)
            self.diag_mfmas(32, lambda j: XD + j // 16, WB, ACC, None)
            self.nop(8)
        else:
            for i in range(2):
                self.rnd_bf16(T1 + i, XD + i)
                A(f"v_sub_f32 v{T1+i}, v{XD+i}, v{T1+i}")
                A(f"v_cvt_pk_bf16_f32 v{XD+i}, v{XD+i}, v{T1+i}")
            self.nop(2)
            self.diag_mfmas(32, lambda j: XD + j // 16, WB, ACC, None, hilo=True, sel=SEL, tb=T0)
            self.nop(8)
            for r in range(4): A(f"v_mov_b32 v{ACC2+r}, v{ACC+r}")
            self.nop(1)
            for r in range(4): A(f"v_permlane32_swap_b32 v{ACC+r}, v{ACC2+r}")
            for r in range(4): A(f"v_add_f32 v{ACC+r}, v{ACC+r}, v{ACC2+r}")
        for r in range(4): A(f"v_min_u32 v{ACC+r}, -2, v{ACC+r}")
        A("s_mov_b32 exec_hi, 0")
        A(f"buffer_store_dwordx4 v[{ACC}:{ACC+3}], v{VL}, s[64:67], s7 offen sc1")
        A("s_mov_b32 exec_hi, -1")
        self.stamp(4)
        lfin = self.newlab("L_hend")
        A("s_cmp_ge_u32 s2, 32"); A(f"s_cbranch_scc1 {lfin}")
        lp = self.newlab("L_gat"); lpd = self.newlab("L_gatd")
        def gl(base):
            for k in range(4):
                A(f"buffer_load_dwordx4 v[{base+4*k}:{base+4*k+3}], v{VG}, s[64:67], s{12+k} offen sc1")
        def gchk(base):
            A(f"v_max3_u32 v{T1}, v{base}, v{base+1}, v{base+2}")
            for k in range(3, 15, 2): A(f"v_max3_u32 v{T1}, v{T1}, v{base+k}, v{base+k+1}")
            A(f"v_max_u32 v{T1}, v{T1}, v{base+15}")
            A(f"v_cmp_eq_u32 vcc, -1, v{T1}")
        A("s_mov_b32 s10, 0")
        if "pp" in self.dbg:
            G2 = G + 16; lb = self.newlab("L_gatb")
            gl(G)
            A(f"s_sleep {self.ppd}")
            gl(G2)
            self.lab(lp)
            A("s_waitcnt vmcnt(4)")
            gchk(G)
            A("s_add_u32 s10, s10, 1")
            A(f"s_cmp_ge_u32 s10, {SPIN_MAX}"); A(f"s_cbranch_scc1 {lpd}")
            A(f"s_cbranch_vccz {lpd}")
            gl(G)
            A("s_waitcnt vmcnt(4)")
            gchk(G2)
            self.nop(4)
            A(f"s_cbranch_vccz {lb}")
            gl(G2)
            A(f"s_branch {lp}")
            self.lab(lb)
            G3 = G + 32
            for r in range(4):
                A(f"v_add_f32 v{G3+r}, v{G2+r}, v{G2+4+r}")
                A(f"v_add_f32 v{G3+8+r}, v{G2+8+r}, v{G2+12+r}")
            lj = self.newlab("L_gatj")
            A(f"s_branch {lj}")
            self.lab(lpd)
            for r in range(4):
                A(f"v_add_f32 v{G3+r}, v{G+r}, v{G+4+r}")
                A(f"v_add_f32 v{G3+8+r}, v{G+8+r}, v{G+12+r}")
            self.lab(lj)
            G = G3
        else:
            self.lab(lp)
            gl(G)
            A("s_waitcnt vmcnt(0)")
            gchk(G)
            A("s_add_u32 s10, s10, 1")
            A(f"s_cmp_ge_u32 s10, {SPIN_MAX}"); A(f"s_cbranch_scc1 {lpd}")
            A(f"s_cbranch_vccnz {lp}")
            self.lab(lpd)
            for r in range(4):
                A(f"v_add_f32 v{G+r}, v{G+r}, v{G+4+r}")
                A(f"v_add_f32 v{G+8+r}, v{G+8+r}, v{G+12+r}")
        self.stamp(5)
        for r in range(4): A(f"v_add_f32 v{G+r}, v{G+r}, v{G+8+r}")
        self.quad_col_reduce(G, G + 4)
        A(f"s_lshl_b32 s7, s9, 6"); A(f"v_lshlrev_b32 v{T0}, 4, v0"); A(f"v_add_u32 v{T0}, s7, v{T0}")
        A("s_mov_b64 exec, 0xf")
        A(f"ds_write_b128 v{T0}, v[{G}:{G+3}] offset:{L_FIN}")
        A("s_mov_b64 exec, -1")
        A("s_waitcnt lgkmcnt(0)")
        A("s_barrier")
        A("s_cmp_lg_u32 s9, 1"); A(f"s_cbranch_scc1 {lfin}")
        A(f"v_lshlrev_b32 v{T0}, 2, v1")
        for h in range(4): A(f"ds_read_b32 v{G+h}, v{T0} offset:{L_FIN+64*h}")
        self.srd(44, 36, 1024)
        A("s_lshl_b32 s7, s2, 5")
        A(f"v_lshlrev_b32 v{T0}, 1, v1")
        A("s_waitcnt lgkmcnt(0)")
        A(f"v_add_f32 v{G}, v{G}, v{G+1}"); A(f"v_add_f32 v{G+2}, v{G+2}, v{G+3}"); A(f"v_add_f32 v{G}, v{G}, v{G+2}")
        self.rnd_bf16(G, G)
        A(f"v_add_f32 v{G}, v{XF}, v{G}")
        self.rnd_bf16(G, G)
        A(f"v_add_f32 v{G}, v{G}, v{BF}")
        A(f"v_cvt_pk_bf16_f32 v{G}, v{G}, v{G}")
        A("s_mov_b64 exec, 0xffff")
        A(f"buffer_store_short v{G}, v{T0}, s[44:47], s7 offen")
        self.stamp(6)
        self.lab(lfin)
        self.stamp_out(13)

    def quad_col_reduce(self, R, T):
        A = self.A
        for ctl in ("row_ror:4", "row_ror:8"):
            self.nop(2)
            for r in range(4):
                A(f"v_add_f32_dpp v{R+r}, v{R+r}, v{R+r} {ctl} row_mask:0xf bank_mask:0xf")
        for s in ("v_permlane16_swap_b32", "v_permlane32_swap_b32"):
            for r in range(4): A(f"v_mov_b32 v{T+r}, v{R+r}")
            self.nop(1)
            for r in range(4): A(f"{s} v{R+r}, v{T+r}")
            for r in range(4): A(f"v_add_f32 v{R+r}, v{R+r}, v{T+r}")

    def sync_wave(self, VZ, G):
        A = self.A
        T0, T1, T2 = 16, 17, 18
        VA, VW, PL, RD = G, G + 1, G + 2, G + 4
        if self.wgmap == "B":
            A(f"v_lshrrev_b32 v{T0}, 2, v0"); A(f"v_lshlrev_b32 v{T0}, 5, v{T0}"); A("s_and_b32 s7, s2, 31"); A(f"v_add_u32 v{T0}, s7, v{T0}")
        else:
            A(f"v_lshrrev_b32 v{T0}, 2, v0"); A("s_and_b32 s7, s2, 0xf8"); A(f"v_add_u32 v{T0}, s7, v{T0}")
        A(f"v_and_b32 v{T0}, 255, v{T0}")
        A(f"v_lshlrev_b32 v{T0}, 7, v{T0}"); A(f"v_and_b32 v{T1}, 3, v0"); A(f"v_lshlrev_b32 v{T1}, 3, v{T1}"); A(f"v_add_u32 v{T0}, v{T0}, v{T1}")
        A(f"v_mul_u32_u24 v{T1}, 15, v1"); A(f"v_add_u32 v{T1}, 1, v{T1}"); A(f"v_add_u32 v{T1}, s2, v{T1}")
        A(f"v_and_b32 v{T1}, 255, v{T1}"); A(f"v_lshlrev_b32 v{T1}, 7, v{T1}"); A(f"v_add_u32 v{T1}, 64, v{T1}")
        A("v_cmp_gt_u32 vcc, 32, v0"); self.nop(2)
        A(f"v_cndmask_b32 v{VA}, v{T1}, v{T0}, vcc")
        A("s_lshl_b32 s7, s2, 7"); A(f"v_lshlrev_b32 v{VW}, 3, v1"); A(f"v_add_u32 v{VW}, s7, v{VW}")
        A(f"v_mov_b32 v{PL}, -1"); A(f"v_mov_b32 v{PL+1}, -1")
        A(f"s_mov_b32 s11, {W_PG}")
        A(f"v_and_b32 v{T2}, 3, v0"); A(f"v_lshlrev_b32 v{T2}, 4, v{T2}")
        ms = self.miles + [64]
        assert 32 in self.miles
        kst = max(k for k in range(len(self.miles)) if self.miles[k] <= 64 - self.TRIG)
        for k in range(len(self.miles)):
            m, nx = ms[k], ms[k + 1]
            l0 = self.newlab("L_ms"); l1 = self.newlab("L_msd"); l2 = self.newlab("L_msn")
            A("s_mov_b32 s10, 0")
            self.lab(l0)
            if m == 32:
                A(f"ds_read_b128 v[{RD}:{RD+3}], v{T2} offset:{L_ST}")
                A("s_waitcnt lgkmcnt(0)")
                A(f"v_cmp_ne_u32 vcc, 1, v{RD+2}")
                A("s_add_u32 s10, s10, 1")
                A(f"s_cmp_ge_u32 s10, {SPIN_MAX*4}"); A(f"s_cbranch_scc1 {l1}")
                A(f"s_cbranch_vccz {l1}")
            else:
                A(f"ds_read_b32 v{T0}, v{VZ} offset:{L_PG}")
                A("s_waitcnt lgkmcnt(0)")
                A(f"v_readfirstlane_b32 s8, v{T0}")
                A("s_add_u32 s10, s10, 1")
                A(f"s_cmp_ge_u32 s10, {SPIN_MAX*4}"); A(f"s_cbranch_scc1 {l1}")
                A(f"s_cmp_ge_u32 s8, {m}"); A(f"s_cbranch_scc1 {l1}")
            A("s_sleep 12")
            A(f"s_branch {l0}")
            self.lab(l1)
            if k == 0:
                self.check_flags(T1, T0, 10)
            if m == 32:
                A("s_mov_b64 exec, 0xf")
                A(f"v_min_u32 v{PL}, -2, v{RD}"); A(f"v_min_u32 v{PL+1}, -2, v{RD+1}")
            elif k != kst and nx < 64:
                A(f"s_cmp_ge_u32 s8, {nx}"); A(f"s_cbranch_scc1 {l2}")
            A("s_mov_b64 exec, 0xfff0")
            A(f"v_mov_b32 v{PL}, {m}"); A(f"v_mov_b32 v{PL+1}, {m}")
            A("s_mov_b64 exec, 0xffff")
            A(f"buffer_store_dwordx2 v[{PL}:{PL+1}], v{VW}, s[64:67], s11 offen sc1")
            lr = self.newlab("L_rd"); lrd = self.newlab("L_rdd")
            A("s_mov_b32 s10, 0")
            self.lab(lr)
            if k == kst:
                A("s_mov_b32 exec_lo, -1"); A("s_mov_b32 exec_hi, 0xffff")
            else:
                A("s_mov_b32 exec_lo, 0"); A("s_mov_b32 exec_hi, 0xffff")
            A(f"buffer_load_dwordx2 v[{RD}:{RD+1}], v{VA}, s[64:67], s11 offen sc1")
            A("s_waitcnt vmcnt(0)")
            A("s_mov_b32 exec_lo, 0")
            A(f"v_cmp_le_i32 vcc, {m}, v{RD}")
            A("s_mov_b64 exec, -1")
            self.nop(4)
            A("s_bcnt1_i32_b64 s8, vcc")
            if self.c0:
                A(f"s_max_u32 s8, s8, {self.c0}"); A(f"s_sub_u32 s8, s8, {self.c0}")
            mul = (nx - m) * self.gain
            if self.cap: mul = min(mul, round(256 * self.cap / (16 - self.c0)))
            A(f"s_mul_i32 s8, s8, {mul}")
            A("s_add_u32 s8, s8, 128"); A("s_lshr_b32 s8, s8, 8")
            A(f"s_min_u32 s8, s8, {nx - m}")
            A(f"s_add_u32 s8, s8, {m + 2}")
            A(f"v_mov_b32 v{T0}, s8")
            if self.ctl: A(f"ds_write_b32 v{VZ}, v{T0} offset:{L_CT}")
            if k == kst:
                A("s_mov_b32 exec_hi, 0")
                A(f"v_max_u32 v{T1}, v{RD}, v{RD+1}")
                A(f"v_cmp_eq_u32 vcc, -1, v{T1}")
                A("s_mov_b64 exec, -1")
                A("s_add_u32 s10, s10, 1")
                A(f"s_cmp_ge_u32 s10, {SPIN_MAX}"); A(f"s_cbranch_scc1 {lrd}")
                A(f"s_cbranch_vccz {lrd}")
                A("s_sleep 64")
                A(f"s_branch {lr}")
                self.lab(lrd)
                A(f"v_mov_b32 v{RD+2}, v{RD}")
                self.bfly("v_max_f32", RD + 2, T1, full=False)
                A(f"v_sub_f32 v{RD}, v{RD}, v{RD+2}")
                A(f"v_mul_f32 v{RD}, {f32(LOG2E)}, v{RD}")
                A(f"v_exp_f32 v{RD}, v{RD}")
                self.nop(1)
                A(f"v_mul_f32 v{RD+1}, v{RD+1}, v{RD}")
                self.bfly("v_add_f32", RD + 1, T1, full=False)
                A(f"v_rcp_f32 v{RD+1}, v{RD+1}")
                self.nop(1)
                A(f"v_mul_f32 v{RD}, v{RD}, v{RD+1}")
                A(f"v_and_b32 v{T0}, 3, v0"); A(f"v_lshlrev_b32 v{T0}, 2, v{T0}")
                A("s_lshl_b32 s8, s5, 2")
                A("s_lshl_b64 s[12:13], 15, s8")
                A("s_mov_b64 exec, s[12:13]")
                A(f"ds_write_b32 v{T0}, v{RD} offset:{L_FW}")
                A("s_mov_b64 exec, -1")
            self.lab(l2)
        A("s_mov_b64 exec, -1")

    def bpart(self, BF, XF, S4, VZ, VG, G):
        A = self.A
        T0, T1, T2 = 16, 17, 18
        self.srd(52, 34, 1024)
        A("s_lshl_b32 s7, s2, 5")
        A(f"v_lshlrev_b32 v{T0}, 1, v1")
        A(f"buffer_load_ushort v{XF}, v{T0}, s[44:47], s7 offen")
        A(f"buffer_load_ushort v{S4}, v{T0}, s[52:55], s7 offen")
        self.wait_trigger(VZ, T1, 10)
        self.check_flags(T1, T2, 10)
        A(f"s_lshl_b32 s7, s2, 6"); A(f"s_add_u32 s7, s7, {W_PART + 256*2048}")
        for r in range(4): A(f"v_mov_b32 v{G+r}, 0")
        A(f"s_mov_b32 exec_hi, {(1 << (NFFN*4 - 32)) - 1}")
        lp = self.newlab("L_bg"); lpd = self.newlab("L_bgd")
        A("s_mov_b32 s10, 0")
        self.lab(lp)
        A(f"buffer_load_dwordx4 v[{G}:{G+3}], v{VG}, s[64:67], s7 offen sc1")
        A("s_waitcnt vmcnt(0)")
        A(f"v_max3_u32 v{T1}, v{G}, v{G+1}, v{G+2}")
        A(f"v_max_u32 v{T1}, v{T1}, v{G+3}")
        A(f"v_cmp_eq_u32 vcc, -1, v{T1}")
        A("s_add_u32 s10, s10, 1")
        A(f"s_cmp_ge_u32 s10, {SPIN_MAX}"); A(f"s_cbranch_scc1 {lpd}")
        A(f"s_cbranch_vccz {lpd}")
        A("s_sleep 64")
        A(f"s_branch {lp}")
        self.lab(lpd)
        A("s_mov_b32 exec_hi, -1")
        self.quad_col_reduce(G, G + 4)
        A(f"v_lshlrev_b32 v{T0}, 4, v0")
        A("s_mov_b64 exec, 0xf")
        A(f"ds_write_b128 v{T0}, v[{G}:{G+3}] offset:{L_FIN+256}")
        A("s_mov_b64 exec, -1")
        A(f"v_lshlrev_b32 v{T0}, 2, v1")
        A("s_waitcnt lgkmcnt(0)")
        A(f"ds_read_b32 v{BF}, v{T0} offset:{L_FIN+256}")
        A(f"v_lshlrev_b32 v{XF}, 16, v{XF}")
        A(f"v_lshlrev_b32 v{S4}, 16, v{S4}")
        A("s_waitcnt lgkmcnt(0)")
        self.rnd_bf16(BF, BF)
        A(f"v_add_f32 v{BF}, v{BF}, v{S4}")
        self.rnd_bf16(BF, BF)

    def ffn(self, WB, XD, VZ, VO, VL, VD, ACC, ACC2, G):
        A = self.A
        T0, T1, T2 = 16, 17, 18
        pace = self.pace
        self.srd(48, 28, 512 * 3584 if "now12" not in self.dbg else 0)
        self.srd(52, 30, 3584)
        self.srd(56, 32, 1792 * 1024 if "now12" not in self.dbg else 0)
        A("s_lshl_b32 s7, s10, 8")
        A(f"v_lshrrev_b32 v{T0}, 1, v{VD}")
        A(f"buffer_load_ushort v{G+8}, v{T0}, s[52:55], s7 offen")
        A(f"buffer_load_ushort v{G+9}, v{T0}, s[52:55], s7 offen offset:128")
        A(f"s_mul_i32 s8, s9, {128*3584}"); A("s_add_u32 s7, s7, s8")
        A(f"v_mul_u32_u24 v{VO}, 3584, v2"); A(f"v_lshlrev_b32 v{T2}, 4, v1"); A(f"v_add3_u32 v{VO}, v{VO}, v{T2}, s7")
        self.wloads(WB, VO, 48, 14336, pace=pace)
        self.diag_mfmas(32, lambda j: XD + j // 16, WB, ACC, 31)
        A(f"s_lshl_b32 s7, s9, 9")
        A(f"v_add_u32 v{T0}, s7, v{VL}")
        A(f"v_mov_b32 v{T1}, 1")
        A("s_mov_b32 exec_hi, 0")
        self.nop(6)
        A(f"ds_write_b128 v{T0}, v[{ACC}:{ACC+3}] offset:{L_FS}")
        A("s_mov_b64 exec, 1")
        A(f"ds_add_u32 v{VZ}, v{T1} offset:{L_FC}")
        A("s_mov_b64 exec, -1")
        A("s_lshl_b32 s7, s10, 17"); A("s_lshl_b32 s8, s9, 8"); A("s_add_u32 s7, s7, s8")
        A(f"v_lshlrev_b32 v{VO}, 10, v2"); A(f"v_lshlrev_b32 v{T2}, 4, v1"); A(f"v_add3_u32 v{VO}, v{VO}, v{T2}, s7")
        self.wloads(WB, VO, 56, 4096, pace=pace)
        l0 = self.newlab("L_fc"); l1 = self.newlab("L_fcd")
        A("s_mov_b32 s11, 0")
        self.lab(l0)
        A(f"ds_read_b32 v{T1}, v{VZ} offset:{L_FC}")
        A("s_waitcnt lgkmcnt(0)")
        A(f"v_cmp_ne_u32 vcc, 4, v{T1}")
        A("s_add_u32 s11, s11, 1")
        A(f"s_cmp_ge_u32 s11, {SPIN_MAX*4}"); A(f"s_cbranch_scc1 {l1}")
        A(f"s_cbranch_vccz {l1}")
        A("s_sleep 8")
        A(f"s_branch {l0}")
        self.lab(l1)
        for w in range(4):
            A(f"ds_read_b32 v{G+2*w}, v{VD} offset:{L_FS+512*w}")
            A(f"ds_read_b32 v{G+2*w+1}, v{VD} offset:{L_FS+512*w+256}")
        A("s_waitcnt lgkmcnt(0)")
        HP = G + 10
        for i in range(2):
            A(f"v_add_f32 v{G+i}, v{G+i}, v{G+2+i}"); A(f"v_add_f32 v{G+4+i}, v{G+4+i}, v{G+6+i}")
            A(f"v_add_f32 v{G+i}, v{G+i}, v{G+4+i}")
            self.rnd_bf16(G + i, G + i)
            A(f"v_lshlrev_b32 v{G+8+i}, 16, v{G+8+i}")
            A(f"v_add_f32 v{G+i}, v{G+i}, v{G+8+i}")
            self.rnd_bf16(G + i, G + i)
            A(f"v_cmp_lt_f32 vcc, 0, v{G+i}"); self.nop(2)
            A(f"v_cndmask_b32 v{G+i}, 0, v{G+i}, vcc")
            A(f"v_mul_f32 v{G+i}, v{G+i}, v{G+i}")
            A(f"v_cvt_pk_bf16_f32 v{HP+i}, v{G+i}, v{G+i}")
        self.check_flags(T1, T2, 11)
        self.diag_mfmas(32, lambda j: HP + j // 16, WB, ACC, None)
        self.nop(8)
        for r in range(4): A(f"v_min_u32 v{ACC2+r}, -2, v{ACC+r}")
        A("s_lshl_b32 s7, s10, 11"); A("s_lshl_b32 s8, s9, 9"); A("s_add_u32 s7, s7, s8"); A(f"s_add_u32 s7, s7, {W_PART + 256*2048}")
        A("s_mov_b32 exec_hi, 0")
        A(f"buffer_store_dwordx4 v[{ACC2}:{ACC2+3}], v{VL}, s[64:67], s7 offen sc1")
        A("s_mov_b32 exec_hi, -1")
        self.nop(2)

if __name__ == "__main__":
    import argparse
    ap = argparse.ArgumentParser()
    ap.add_argument("out"); ap.add_argument("--D", type=int, default=6); ap.add_argument("--mode", default="slow")
    ap.add_argument("--stamps", action="store_true"); ap.add_argument("--map", default="A"); ap.add_argument("--dbg", default="")
    a = ap.parse_args()
    open(a.out, "w").write(Gen(a.D, a.mode, a.stamps, a.map, a.dbg).build())
```

```python
import sys, struct
KN = "parallel_sum__mha_block_cached__dense_activation_squared_relu__decode"

def f32(x):
    return "0x%08x" % struct.unpack("<I", struct.pack("<f", x))[0]

HEADER = """; Kernarg layout for this problem (104 bytes, ptrs only, base s[0:1]):
;   offset   0: d_in[0] A_x  shape=(1, 1, 512) dtype=bfloat16 strides=(1024, 1024, 2) contiguous=True
;   offset   8: d_in[1] A_k_cache  shape=(1, 32, 65536, 128) dtype=bfloat16 strides=(536870912, 16777216, 256, 2) contiguous=True
;   offset  16: d_in[2] A_v_cache  shape=(1, 32, 65536, 128) dtype=bfloat16 strides=(536870912, 16777216, 256, 2) contiguous=True
;   offset  24: d_in[3] A_wq  shape=(512, 4096) dtype=bfloat16 strides=(8192, 2) contiguous=True
;   offset  32: d_in[4] A_wo  shape=(4096, 512) dtype=bfloat16 strides=(1024, 2) contiguous=True
;   offset  40: d_in[5] B_x  shape=(1, 1, 512) dtype=bfloat16 strides=(1024, 1024, 2) contiguous=True
;   offset  48: d_in[6] B_w1  shape=(512, 1792) dtype=bfloat16 strides=(3584, 2) contiguous=True
;   offset  56: d_in[7] B_b1  shape=(1792,) dtype=bfloat16 strides=(2,) contiguous=True
;   offset  64: d_in[8] B_w2  shape=(1792, 512) dtype=bfloat16 strides=(1024, 2) contiguous=True
;   offset  72: d_in[9] B_b2  shape=(512,) dtype=bfloat16 strides=(2,) contiguous=True
;   offset  80: d_out     shape=(1, 1, 512) dtype=bfloat16 (2 bytes/elem)
;   offset  96: d_ws      2147483648 bytes workspace
"""

DESIGN = """;
; Workgroup = (head, 8192-key slice).  Waves 0-3 stream K then V (non-temporal 1-KiB loads, small in-flight window):
;   K phase: v_dot2 + DPP transposing reduction -> scores (rounded like the reference) kept in LDS, running max / sum
; Hand-offs go through d_ws with write-through stores / sc1 loads; slots are reset to an EMPTY marker at the start of
;   with 16 others and widens its prefetch window when it lags (bandwidth balancing; affects speed only).
"""

L_QP   = 0
L_OP   = 2048
L_ST   = 4096
L_FW   = 4160
L_TR   = 4176
L_FIN  = 4224
L_FC   = 4180
L_CT   = 4184
L_PG   = 4192
L_FS   = 4608
L_SC   = 8192
LDS_BYTES = L_SC + 4 * 8192

W_ST   = 0
W_PG   = 0x8000
W_PART = 0x10000
WS_BYTES = W_PART + 272 * 2048
NFFN = 14
FFN_WG0 = 32
SPIN_MAX = 1000000

LOG2E = 1.4426950408889634
SCALE = 128 ** -0.5

def c_of_tile(i):
    for c in range(16):
        t = (c >> 3) | (((c >> 2) & 1) << 1) | ((c & 1) << 2) | (((c >> 1) & 1) << 3)
        if t == i:
            return c

class Gen:
    def __init__(self, D=6, mode="slow", stamps=False, wgmap="A", dbg=""):
        self.dbg = dbg.split(",")
        self.wpol = " nt" if "wnt" in self.dbg else ""
        self.NPRE = 48
        self.TRIG = 8
        self.pace = 0
        self.wqpace = 0
        self.rot = None
        self.hrot = 0; self.qrot = "qrot" in self.dbg
        self.duty = None; self.dinit = 0
        self.iw = 0; self.pw = 0
        self.spol = "nt"
        self.cap = 0
        self.ppd = 8
        self.nsp = 1; self.dend = D
        self.wopace = None; self.wodelay = 0; self.wopol = None
        self.lo = 1
        self.ctl = "ctl" in self.dbg
        self.c0 = 0; self.gain = 16
        self.miles = [16, 32, 44, 54, 60]
        self.fk = 4 if mode == "fast" else 0
        self.fv = self.fk
        for o in self.dbg:
            if o.startswith("pre"): self.NPRE = int(o[3:])
            if o.startswith("trig"): self.TRIG = int(o[4:])
            if o.startswith("pace"): self.pace = int(o[4:])
            if o.startswith("lo"): self.lo = int(o[2:])
            if o.startswith("c0"): self.c0 = int(o[2:])
            if o.startswith("gain"): self.gain = int(o[4:])
            if o.startswith("ms"): self.miles = [int(x) for x in o[2:].split("-")]
            if o.startswith("wop"): self.wopace = int(o[3:])
            if o.startswith("wod") and o != "wodef": self.wodelay = int(o[3:])
            if o == "wodef": self.wopol = ""
            if o.startswith("nsp"): self.nsp = int(o[3:])
            if o.startswith("dend"): self.dend = int(o[4:])
            if o.startswith("rr"): self.rot = (0x9E3779B1, int(o[2:]) * 1024 - 1)
            if o.startswith("sk"): self.rot = (int(o[2:]) * 1024, 0xffffffff)
            if o.startswith("ppd"): self.ppd = int(o[3:])
            if o.startswith("cap"): self.cap = int(o[3:])
            if o.startswith("sp_"): self.spol = o[3:].replace("_", " ")
            if o.startswith("iw"): self.iw = int(o[2:])
            if o.startswith("pw"): self.pw = int(o[2:])
            if o.startswith("dinit"): self.dinit = int(o[5:])
            if o.startswith("duty"): self.duty = int(o[4:])
            if o.startswith("wp_"): self.wpol = " " + o[3:].replace("_", " ")
            if o.startswith("hrot"): self.hrot = int(o[4:])
            if o.startswith("wqp"): self.wqpace = int(o[3:])
            if o.startswith("fk"): self.fk = int(o[2:])
            if o.startswith("fv"): self.fv = int(o[2:])
        self.wgmap = wgmap
        self.L = []
        self.D = D
        self.mode = mode
        self.stamps = stamps
        self.nlab = 0
        if self.wopace is None: self.wopace = self.pace
    def A(self, s):
        self.L.append("  " + s)
    def lab(self, name):
        self.L.append(name + ":")
    def newlab(self, p="L"):
        self.nlab += 1
        return f"{p}_{self.nlab}"
    def nop(self, n):
        while n > 0:
            k = min(n, 16)
            self.A(f"s_nop {k-1}")
            n -= k
    def rnd_bf16(self, d, s):
        self.A(f"v_cvt_pk_bf16_f32 v{d}, v{s}, v{s}")
        self.A(f"v_and_b32 v{d}, 0xffff0000, v{d}")
    def bfly(self, op, v, t, full=True):
        for ctl in ("quad_perm:[1,0,3,2]", "quad_perm:[2,3,0,1]", "row_half_mirror", "row_mirror"):
            self.nop(2)
            self.A(f"{op}_dpp v{v}, v{v}, v{v} {ctl} row_mask:0xf bank_mask:0xf")
        sw = ["v_permlane16_swap_b32"] + (["v_permlane32_swap_b32"] if full else [])
        for s in sw:
            self.A(f"v_mov_b32 v{t}, v{v}")
            self.nop(2)
            self.A(f"{s} v{v}, v{t}")
            self.nop(1)
            self.A(f"{op} v{v}, v{v}, v{t}")
    def srd(self, d, base, nbytes):
        self.A(f"s_mov_b32 s{d}, s{base}")
        self.A(f"s_and_b32 s{d+1}, s{base+1}, 0xffff")
        self.A(f"s_mov_b32 s{d+2}, {nbytes}")
        self.A(f"s_mov_b32 s{d+3}, 0x20000")
    def poll_counter(self, voff, off, target, vt, st, sc):
        l0 = self.newlab("L_poll"); l1 = self.newlab("L_polld")
        self.A(f"s_mov_b32 s{sc}, 0")
        self.lab(l0)
        self.A(f"buffer_load_dword v{vt}, v{voff}, s[60:63], 0 offen offset:{off} sc1")
        self.A("s_waitcnt vmcnt(0)")
        self.A(f"v_readfirstlane_b32 s{st}, v{vt}")
        self.A(f"s_add_u32 s{sc}, s{sc}, 1")
        self.A(f"s_cmp_ge_u32 s{st}, {target}")
        self.A(f"s_cbranch_scc1 {l1}")
        self.A(f"s_cmp_ge_u32 s{sc}, {SPIN_MAX}")
        self.A(f"s_cbranch_scc1 {l1}")
        self.A("s_sleep 64")
        self.A(f"s_branch {l0}")
        self.lab(l1)
    def wait_trigger(self, vz, vt, sc):
        l0 = self.newlab("L_tr"); l1 = self.newlab("L_trd")
        self.A(f"s_mov_b32 s{sc}, 0")
        self.lab(l0)
        self.A(f"ds_read_b32 v{vt}, v{vz} offset:{L_TR}")
        self.A("s_waitcnt lgkmcnt(0)")
        self.A(f"v_cmp_ne_u32 vcc, 1, v{vt}")
        self.A(f"s_add_u32 s{sc}, s{sc}, 1")
        self.A(f"s_cmp_ge_u32 s{sc}, {SPIN_MAX*4}"); self.A(f"s_cbranch_scc1 {l1}")
        self.A(f"s_cbranch_vccz {l1}")
        self.A("s_sleep 32")
        self.A(f"s_branch {l0}")
        self.lab(l1)
    def stamp(self, idx):
        if self.stamps:
            self.A(f"s_memrealtime s[{70+2*idx}:{71+2*idx}]")
    def stamp_out(self, n):
        if not self.stamps: return
        self.A("s_waitcnt lgkmcnt(0)")
        self.A("s_mov_b64 exec, -1")
        self.A("s_lshl_b32 s4, s2, 3"); self.A("s_add_u32 s4, s4, s3"); self.A("s_lshl_b32 s4, s4, 7"); self.A("s_add_u32 s4, s4, 0x100000")
        self.A("v_mov_b32 v1, s4")
        self.A("s_getreg_b32 s5, hwreg(HW_REG_XCC_ID)")
        for i in range(n):
            self.A(f"v_mov_b32 v2, s{70+2*i}"); self.A(f"v_mov_b32 v3, s{71+2*i}")
            self.A(f"global_store_dwordx2 v1, v[2:3], s[40:41] offset:{8*i}")
            self.nop(2)
        self.A("v_mov_b32 v2, s5")
        self.A(f"global_store_dword v1, v2, s[40:41] offset:120")

    def build(self):
        A = self.A; D = self.D
        self.L.append(HEADER.rstrip("\n"))
        self.L.append(f"; @launch grid=(256,1,1) block=(512,1,1) lds={LDS_BYTES}")
        self.L.append(DESIGN.rstrip("\n"))
        self.L.append('.amdgcn_target "amdgcn-amd-amdhsa--gfx950"')
        self.L.append(".text"); self.L.append(f".globl {KN}_kernel"); self.L.append(".p2align 8")
        self.L.append(f".type {KN}_kernel,@function"); self.L.append(f"{KN}_kernel:")
        A("s_cmp_ge_u32 s2, 256"); A("s_cbranch_scc1 L_end")
        A("s_load_dwordx16 s[16:31], s[0:1], 0")
        A("s_load_dwordx8 s[32:39], s[0:1], 64")
        A("s_load_dwordx2 s[40:41], s[0:1], 96")
        self.stamp(0)
        A("v_lshrrev_b32 v1, 6, v0")
        A("v_and_b32 v0, 63, v0")
        A("v_readfirstlane_b32 s3, v1")
        A("v_and_b32 v1, 15, v0")
        A("v_lshrrev_b32 v2, 4, v0")
        if self.wgmap == "B":
            A("s_and_b32 s4, s2, 7"); A("s_lshl_b32 s4, s4, 2")
            A("s_lshr_b32 s5, s2, 3"); A("s_and_b32 s6, s5, 3"); A("s_add_u32 s4, s4, s6")
            A("s_lshr_b32 s5, s2, 5")
        else:
            A("s_lshr_b32 s4, s2, 3")
            A("s_and_b32 s5, s2, 7")
        A("v_lshrrev_b32 v3, 1, v1")
        A("v_and_b32 v8, 1, v1")
        A("v_mov_b32 v9, 0xffff")
        A("v_lshlrev_b32 v8, 4, v8")
        A("v_lshlrev_b32 v9, v8, v9")
        for k in range(4):
            A(f"v_cmp_eq_u32 vcc, {k}, v3")
            self.nop(2)
            A(f"v_cndmask_b32 v{4+k}, 0, v9, vcc")
        A("s_cmp_ge_u32 s3, 4")
        A("s_cbranch_scc1 L_helper")
        self.stream_wave()
        self.lab("L_helper")
        self.helper_wave()
        self.lab("L_end"); A("s_endpgm")
        self.L.append('.section .rodata,"a"'); self.L.append(".p2align 6"); self.L.append(f".amdhsa_kernel {KN}_kernel")
        A(".amdhsa_next_free_vgpr 256"); A(".amdhsa_next_free_sgpr 100"); A(".amdhsa_accum_offset 256")
        A(".amdhsa_group_segment_fixed_size 0"); A(".amdhsa_kernarg_size 104"); A(".amdhsa_user_sgpr_count 2")
        A(".amdhsa_user_sgpr_kernarg_segment_ptr 1"); A(".amdhsa_system_sgpr_workgroup_id_x 1")
        self.L.append(".end_amdhsa_kernel")
        return "\n".join(self.L) + "\n"

    def stream_wave(self):
        A = self.A; D = self.D
        VOFF = 10; Q = 12
        RB = 64
        P = 32
        T0, T1 = 16, 17
        M, LS = 18, 19
        SCA = 20
        PK = 21; SN = 22
        AA = (24, 28)
        ACC = 48
        TQ = 52
        if "noprio" not in self.dbg: A("s_setprio 2")
        A("s_waitcnt lgkmcnt(0)")
        A("s_lshl_b32 s6, s4, 24"); A("s_lshl_b32 s7, s5, 21"); A("s_add_u32 s6, s6, s7")
        for sd, sb in ((44, 18), (48, 20)):
            A(f"s_add_u32 s{sd}, s{sb}, s6"); A(f"s_addc_u32 s{sd+1}, s{sb+1}, 0"); A(f"s_and_b32 s{sd+1}, s{sd+1}, 0xffff")
            A(f"s_mov_b32 s{sd+2}, 0x200000"); A(f"s_mov_b32 s{sd+3}, 0x20000")
        A("s_lshl_b32 s7, s3, 10")
        A(f"v_lshlrev_b32 v{VOFF}, 4, v0"); A(f"v_add_u32 v{VOFF}, s7, v{VOFF}")
        if self.rot:
            mul, mask = self.rot
            A(f"s_mul_i32 s52, s2, {mul}"); A(f"s_and_b32 s52, s52, {mask & 0x1ff000}")
            A("s_mov_b32 s8, s52")
        else:
            A("s_mov_b32 s8, 0")
        NPRE = self.NPRE
        def slot_reg(k):
            if k < 16 or k >= NPRE: return RB + 4 * (k % 16)
            return 128 + 4 * (k - 16)
        def load(k, srd, reg=None):
            b = RB + 4 * (k % 16) if reg is None else reg
            A(f"buffer_load_dwordx4 v[{b}:{b+3}], v{VOFF}, s[{srd}:{srd+3}], s8 offen {self.spol}")
            A("s_add_u32 s8, s8, 4096")
            if self.rot: A("s_and_b32 s8, s8, 0x1fffff")
        DW = D - self.lo if self.mode == "slow" else D
        IW = max(DW, self.iw)
        for i in range(min(NPRE, IW)): load(i, 44, slot_reg(i))
        A("s_mov_b32 s10, 0xaaaaaaaa"); A("s_mov_b32 s11, 0xaaaaaaaa")
        A("s_mov_b32 s12, 0xcccccccc"); A("s_mov_b32 s13, 0xcccccccc")
        A(f"s_mov_b32 s14, {f32(SCALE)}"); A(f"s_mov_b32 s15, {f32(LOG2E)}")
        A(f"v_mov_b32 v{M}, 0xff7fffff"); A(f"v_mov_b32 v{LS}, 0")
        A(f"s_lshl_b32 s7, s3, 13"); A(f"s_add_u32 s7, s7, {L_SC}")
        A(f"v_lshlrev_b32 v{SCA}, 2, v0"); A(f"v_add_u32 v{SCA}, s7, v{SCA}")
        for r in range(4): A(f"v_mov_b32 v{ACC+r}, 0")
        A(f"v_lshlrev_b32 v{T0}, 5, v1")
        def set_mode(nfast):
            A(f"s_cmp_lt_u32 s3, {nfast}"); A("s_cselect_b64 vcc, -1, 0")
        set_mode(self.fk)
        for i in range(IW, NPRE):
            A(f"s_waitcnt vmcnt({(self.pw or DW)-1})")
            load(i, 44, slot_reg(i))
        self.stamp(4)
        A("s_barrier")
        self.stamp(1)
        tq = list(range(P, P + 16)) + list(range(TQ, TQ + 12)) + list(range(AA[0], AA[0] + 4))
        for h in range(4):
            for hf in range(2):
                r = tq[8 * h + 4 * hf]
                A(f"ds_read_b128 v[{r}:{r+3}], v{T0} offset:{L_QP+512*h+16*hf}")
        A("s_waitcnt lgkmcnt(0)")
        for e in range(8):
            A(f"v_add_f32 v{tq[e]}, v{tq[e]}, v{tq[8+e]}")
            A(f"v_add_f32 v{tq[16+e]}, v{tq[16+e]}, v{tq[24+e]}")
        for e in range(8):
            A(f"v_add_f32 v{tq[e]}, v{tq[e]}, v{tq[16+e]}")
        for k in range(4):
            A(f"v_cvt_pk_bf16_f32 v{Q+k}, v{tq[2*k]}, v{tq[2*k+1]}")
        def wait_tile(n):
            A(f"s_waitcnt vmcnt({n})")
        def mode_wait():
            l = self.newlab("L_m")
            A(f"s_cbranch_vccnz {l}")
            A(f"s_waitcnt vmcnt({D-1-self.lo})")
            self.lab(l)
        VPG, VCT, VZ0 = 23, 11, 9
        def ctl_top(wait=True):
            if wait: A("s_waitcnt lgkmcnt(0)")
            A(f"v_readfirstlane_b32 s43, v{VCT}")
            A(f"v_mov_b32 v{T0}, s42")
            A(f"ds_write_b32 v{VPG}, v{T0}")
            A(f"ds_read_b32 v{VCT}, v{VZ0} offset:{L_CT}")
            if self.duty is None:
                A("s_cmp_lt_u32 s42, s43"); A("s_cselect_b64 vcc, -1, 0")
            else:
                A("s_add_u32 s53, s53, s43")
                A("s_cmp_ge_u32 s53, 256"); A("s_cselect_b64 vcc, -1, 0")
                A("s_and_b32 s53, s53, 255")
            A("s_add_u32 s42, s42, 1")
        def dots(i, reg=None):
            b = RB + 4 * i if reg is None else reg
            if "nok" in self.dbg: return
            A(f"v_dot2_f32_bf16 v{P+i}, v{b}, v{Q}, 0")
            for k in range(1, 4):
                A(f"v_dot2_f32_bf16 v{P+i}, v{b+k}, v{Q+k}, v{P+i}")
        def l1(a, b):
            A(f"v_add_f32_dpp v{P+a}, v{P+a}, v{P+a} row_ror:8 row_mask:0xf bank_mask:0x3")
            A(f"v_add_f32_dpp v{P+a}, v{P+b}, v{P+b} row_ror:8 row_mask:0xf bank_mask:0xc")
        def l2(a, b):
            A(f"v_add_f32_dpp v{P+a}, v{P+a}, v{P+a} row_half_mirror row_mask:0xf bank_mask:0x5")
            A(f"v_add_f32_dpp v{P+a}, v{P+b}, v{P+b} row_half_mirror row_mask:0xf bank_mask:0xa")
        def l34(a, b, sm, qp):
            A(f"v_cndmask_b32 v{T0}, v{P+b}, v{P+a}, s[{sm}:{sm+1}]")
            A(f"v_cndmask_b32 v{T1}, v{P+a}, v{P+b}, s[{sm}:{sm+1}]")
            self.nop(2)
            A(f"v_add_f32_dpp v{P+a}, v{T0}, v{T1} quad_perm:{qp} row_mask:0xf bank_mask:0xf")
        def combos_after(i):
            if "nok" in self.dbg: return
            if i >= 2 and i % 2 == 0: l1(i - 2, i - 1)
            if i >= 5 and i % 4 == 1: l2(i - 5, i - 3)
            if i == 11: l34(0, 4, 10, "[1,0,3,2]")
        def finish_iter():
            self.nop(3)
            l1(14, 15)
            self.nop(2)
            l2(12, 14)
            self.nop(1)
            l34(8, 12, 10, "[1,0,3,2]")
            self.nop(1)
            l34(0, 8, 12, "[2,3,0,1]")
            S = P
            if "noround" not in self.dbg: self.rnd_bf16(S, S)
            A(f"v_mul_f32 v{S}, s14, v{S}")
            if "noround" not in self.dbg: self.rnd_bf16(S, S)
            A(f"ds_write_b32 v{SCA}, v{S}")
            A(f"v_add_u32 v{SCA}, 256, v{SCA}")
            A(f"v_max_f32 v{T0}, v{M}, v{S}")
            A(f"v_sub_f32 v{T1}, v{M}, v{T0}")
            A(f"v_sub_f32 v{S}, v{S}, v{T0}")
            A(f"v_mul_f32 v{T1}, s15, v{T1}")
            A(f"v_mul_f32 v{S}, s15, v{S}")
            A(f"v_exp_f32 v{T1}, v{T1}")
            A(f"v_exp_f32 v{S}, v{S}")
            A(f"v_mov_b32 v{M}, v{T0}")
            A(f"v_fma_f32 v{LS}, v{LS}, v{T1}, v{S}")
        NCU = NPRE + 16
        issued = NPRE
        last_issue = NCU + D
        ratio = NPRE // 16
        for t in range(NCU):
            need = issued - 1 - t
            wait_tile(min(need, 63))
            dots(t % 16, slot_reg(t))
            combos_after(t % 16)
            if t % 16 == 15: finish_iter()
            want = False
            if t < NPRE:
                want = (t % ratio == ratio - 1)
            else:
                k = issued - NCU
                want = (t - NPRE + 1) * D >= (k + 1) * 16
            while want and issued < last_issue:
                assert issued - 16 <= t if issued >= NCU else (issued % 16) <= t
                A(f"s_waitcnt vmcnt({DW-1})")
                load(issued, 44); issued += 1
                want = False
        assert issued == last_issue, (issued, last_issue)
        A(f"s_mov_b32 s9, {31 - NCU // 16}")
        if True:
            A(f"s_mov_b32 s42, {NCU // 16}")
            A(f"v_mov_b32 v{VCT}, 0"); A(f"v_mov_b32 v{VZ0}, 0")
            if self.duty is not None:
                A("s_mul_i32 s53, s2, 37"); A("s_and_b32 s53, s53, 255")
            A(f"s_lshl_b32 s7, s3, 2"); A(f"s_add_u32 s7, s7, {L_PG}"); A(f"v_mov_b32 v{VPG}, s7")
        self.lab("L_kloop")
        ctl_top()
        for i in range(16):
            wait_tile(D - 1); mode_wait(); load(i + D, 44); dots(i); combos_after(i)
        finish_iter()
        A("s_sub_u32 s9, s9, 1"); A("s_cmp_lg_u32 s9, 0"); A("s_cbranch_scc1 L_kloop")
        ctl_top()
        for i in range(16):
            wait_tile(D - 1); mode_wait()
            if i + D == 16 and not self.rot: A("s_mov_b32 s8, 0")
            load(i + D, 44 if i + D < 16 else 48); dots(i); combos_after(i)
        finish_iter()
        self.stamp(2)
        A(f"v_subrev_u32 v{SCA}, 8192, v{SCA}")
        A(f"ds_read_b32 v{SN}, v{SCA}")
        A(f"v_mov_b32 v{P}, v{M}")
        self.bfly("v_max_f32", P, T0)
        A(f"v_sub_f32 v{T1}, v{M}, v{P}")
        A(f"v_mul_f32 v{T1}, s15, v{T1}")
        A(f"v_exp_f32 v{T1}, v{T1}")
        A(f"v_mov_b32 v{M}, v{P}")
        A(f"v_mul_f32 v{P+1}, v{LS}, v{T1}")
        self.bfly("v_add_f32", P + 1, T0)
        A(f"v_mov_b32 v{P+2}, 1"); A(f"v_mov_b32 v{P+3}, 0")
        A(f"s_lshl_b32 s7, s3, 4"); A(f"s_add_u32 s7, s7, {L_ST}"); A(f"v_mov_b32 v{T0}, s7")
        A("s_mov_b64 exec, 1")
        A(f"ds_write_b128 v{T0}, v[{P}:{P+3}]")
        A("s_mov_b64 exec, -1")
        NSP = self.nsp
        st = {"issued": D}
        def v_iter(last, sp=None):
            A("s_waitcnt lgkmcnt(0)")
            if sp is None: ctl_top(False)
            A(f"v_sub_f32 v{PK}, v{SN}, v{M}")
            A(f"v_mul_f32 v{PK}, s15, v{PK}")
            A(f"v_exp_f32 v{PK}, v{PK}")
            if not last:
                A(f"v_add_u32 v{SCA}, 256, v{SCA}")
                A(f"ds_read_b32 v{SN}, v{SCA}")
            else:
                self.nop(1)
            A(f"v_cvt_pk_bf16_f32 v{PK}, v{PK}, v{PK}")
            self.nop(2)
            for i in range(16):
                a = AA[i % 2]
                for k in range(4 if "nov" not in self.dbg else 0):
                    A(f"v_and_b32_dpp v{a+k}, v{PK}, v{4+k} row_newbcast:{c_of_tile(i)} row_mask:0xf bank_mask:0xf")
                if sp is None:
                    wait_tile(D - 1); mode_wait(); load(i + D, 48)
                else:
                    t = sp * 16 + i
                    wait_tile(st["issued"] - 1 - t)
                    n = 0
                    while st["issued"] < NSP * 16 and st["issued"] - t <= self.dend and st["issued"] - 16 < t and n < 2:
                        if self.dend <= D and n == 0: mode_wait()
                        load(st["issued"], 48); st["issued"] += 1; n += 1
                        if self.dend <= D: break
                    if n == 0: self.nop(1)
                b = RB + 4 * i
                if "nov" not in self.dbg and "nomfma" not in self.dbg:
                    A(f"v_mfma_f32_16x16x32_bf16 v[{ACC}:{ACC+3}], v[{a}:{a+3}], v[{b}:{b+3}], v[{ACC}:{ACC+3}]")
        A(f"s_mov_b32 s9, {32 - NSP}")
        self.lab("L_vloop")
        v_iter(False)
        A(f"s_cmp_lg_u32 s9, {self.TRIG - NSP + 1}"); A("s_cbranch_scc1 L_notrig")
        A(f"v_mov_b32 v{T0}, {L_TR}"); A(f"v_mov_b32 v{T1}, 1")
        A(f"ds_write_b32 v{T0}, v{T1}")
        self.lab("L_notrig")
        A("s_sub_u32 s9, s9, 1"); A("s_cmp_lg_u32 s9, 0"); A("s_cbranch_scc1 L_vloop")
        A(f"s_lshl_b32 s7, s3, 9"); A(f"s_add_u32 s7, s7, {L_OP}")
        A(f"v_lshlrev_b32 v{T0}, 5, v1"); A(f"v_lshlrev_b32 v{T1}, 4, v2"); A(f"v_add3_u32 v{T0}, v{T0}, v{T1}, s7")
        for sp in range(NSP): v_iter(sp == NSP - 1, sp)
        assert st["issued"] == NSP * 16
        A("s_mov_b32 exec_hi, 0")
        self.nop(8)
        A(f"ds_write_b128 v{T0}, v[{ACC}:{ACC+3}]")
        A("s_waitcnt lgkmcnt(0)")
        A("s_barrier")
        self.stamp(3)
        self.stamp_out(5)
        A("s_endpgm")

    def diag_mfmas(self, n, pk_of, wb, acc, waitbase, first_zero=True, hilo=False, sel=None, tb=None):
        A = self.A
        AA = (24, 28)
        def build(j):
            a = AA[j % 2]
            if not hilo:
                for k in range(4):
                    A(f"v_and_b32_dpp v{a+k}, v{pk_of(j)}, v{4+k} row_newbcast:{j%16} row_mask:0xf bank_mask:0xf")
            else:
                A(f"v_mov_b32_dpp v{tb}, v{pk_of(j)} row_newbcast:{j%16} row_mask:0xf bank_mask:0xf")
                for k in range(4):
                    A(f"v_perm_b32 v{a+k}, v{tb}, v{tb}, v{sel+k}")
        build(0)
        for j in range(n):
            if j + 1 < n: build(j + 1)
            else: self.nop(2)
            if waitbase is not None: A(f"s_waitcnt vmcnt({waitbase - j})")
            a = AA[j % 2]; b = wb + 4 * j
            c = "0" if (j == 0 and first_zero) else f"v[{acc}:{acc+3}]"
            A(f"v_mfma_f32_16x16x32_bf16 v[{acc}:{acc+3}], v[{a}:{a+3}], v[{b}:{b+3}], {c}")

    def check_flags(self, vt, va, sc):
        A = self.A
        l0 = self.newlab("L_fl"); l1 = self.newlab("L_fld")
        A(f"v_and_b32 v{va}, 31, v0"); A(f"v_lshlrev_b32 v{va}, 2, v{va}")
        A(f"s_mov_b32 s{sc}, 0")
        self.lab(l0)
        A(f"buffer_load_dword v{vt}, v{va}, s[60:63], 0 offen sc1")
        A("s_waitcnt vmcnt(0)")
        A(f"v_cmp_eq_u32 vcc, 0, v{vt}")
        A(f"s_add_u32 s{sc}, s{sc}, 1")
        A(f"s_cmp_ge_u32 s{sc}, {SPIN_MAX}"); A(f"s_cbranch_scc1 {l1}")
        A(f"s_cbranch_vccz {l1}")
        A("s_sleep 64")
        A(f"s_branch {l0}")
        self.lab(l1)

    def wloads(self, WB, VO, srd, step, imm=0, pace=0, rot=True):
        A = self.A
        A("s_mov_b32 s69, s68" if rot else "s_mov_b32 s69, 0"); A(f"s_mul_i32 s8, s69, {step}")
        for j in range(32):
            o = f" offset:{imm}" if imm else ""
            A(f"buffer_load_dwordx4 v[{WB+4*j}:{WB+4*j+3}], v{VO}, s[{srd}:{srd+3}], s8 offen{o}{self.wpol}")
            if j < 31:
                A("s_add_u32 s69, s69, 1"); A("s_and_b32 s69, s69, 31"); A(f"s_mul_i32 s8, s69, {step}")
            if pace: A(f"s_waitcnt vmcnt({pace-1})")

    def helper_wave(self):
        A = self.A
        WB = 128
        XV = 32
        XD = 44
        T0, T1, T2 = 16, 17, 18
        MEAN, RS = 19, 20
        VZ = 21
        VO = 22
        VL = 23
        VD = 46
        VM = 48
        ACC = 52
        SEL = 56
        ACC2 = 60
        G = 64
        A("s_sub_u32 s9, s3, 4")
        A("s_waitcnt lgkmcnt(0)")
        self.stamp(9)
        self.srd(44, 16, 1024)
        self.srd(48, 22, 512 * 8192 if "nowq" not in self.dbg else 0)
        A(f"v_lshlrev_b32 v{T0}, 4, v0")
        A(f"buffer_load_dwordx4 v[{XV}:{XV+3}], v{T0}, s[44:47], 0 offen")
        if self.hrot:
            A(f"s_mul_i32 s68, s4, {self.hrot}"); A("s_and_b32 s68, s68, 31")
        else:
            A("s_mov_b32 s68, 0")
        VD1 = 80
        for r, add in ((VD, 0), (VD1, 16)):
            A(f"v_add_u32 v{r}, s68, v1")
            if add: A(f"v_add_u32 v{r}, {add}, v{r}")
            A(f"v_and_b32 v{r}, 31, v{r}"); A(f"v_lshlrev_b32 v{r}, 2, v{r}"); A(f"v_add_u32 v{r}, v{r}, v2")
        if self.qrot:
            A(f"v_lshlrev_b32 v{T1}, 1, v{VD}"); A(f"v_lshlrev_b32 v{T2}, 1, v{VD1}")
        else:
            A(f"v_lshlrev_b32 v{T1}, 2, v1"); A(f"v_add_u32 v{T1}, v{T1}, v2"); A(f"v_lshlrev_b32 v{T1}, 1, v{T1}"); A(f"v_add_u32 v{T2}, 128, v{T1}")
        A("s_lshl_b32 s7, s9, 8")
        A(f"buffer_load_ushort v{XD}, v{T1}, s[44:47], s7 offen")
        A(f"buffer_load_ushort v{XD+1}, v{T2}, s[44:47], s7 offen")
        A("s_lshl_b32 s7, s4, 8"); A("s_lshl_b32 s8, s9, 20"); A("s_add_u32 s7, s7, s8")
        A(f"v_lshlrev_b32 v{VO}, 13, v2"); A(f"v_lshlrev_b32 v{T2}, 4, v1"); A(f"v_add3_u32 v{VO}, v{VO}, v{T2}, s7")
        self.wloads(WB, VO, 48, 32768, pace=self.wqpace, rot=self.qrot)
        self.srd(60, 38, 256)
        self.srd(64, 40, WS_BYTES)
        self.srd(52, 40, WS_BYTES)
        A("s_cmp_lt_u32 s2, 32"); A(f"s_cselect_b32 s54, {WS_BYTES if 'noinit' not in self.dbg else W_PART}, 0")
        for r in range(4): A(f"v_mov_b32 v{VM+r}, -1")
        A("s_lshl_b32 s7, s2, 14"); A("s_lshl_b32 s8, s9, 12"); A("s_add_u32 s7, s7, s8"); A(f"s_add_u32 s7, s7, {W_PART}")
        for k in range(4):
            A(f"buffer_store_dwordx4 v[{VM}:{VM+3}], v{T0}, s[52:55], s7 offen offset:{1024*k} sc1")
        A("s_lshl_b32 s7, s2, 11"); A("s_lshl_b32 s8, s9, 10"); A("s_add_u32 s7, s7, s8"); A(f"s_add_u32 s7, s7, {W_PART + 256*2048 - 1024}")
        A(f"s_cmp_lt_u32 s2, {NFFN}"); A(f"s_cselect_b32 s7, s7, {WS_BYTES}")
        A("s_lshl_b32 s8, s2, 10"); A(f"s_add_u32 s8, s8, {W_PG}")
        A("s_cmp_eq_u32 s9, 3"); A(f"s_cselect_b32 s7, s8, s7")
        A("s_cmp_eq_u32 s9, 0"); A(f"s_cselect_b32 s7, {WS_BYTES}, s7")
        A(f"buffer_store_dwordx4 v[{VM}:{VM+3}], v{T0}, s[52:55], s7 offen sc1")
        NS = 5
        A(f"v_mov_b32 v{VZ}, 0")
        A(f"v_lshlrev_b32 v{VD}, 2, v{VD}"); A(f"v_lshlrev_b32 v{VD1}, 2, v{VD1}")
        A(f"v_lshlrev_b32 v{VL}, 5, v1"); A(f"v_and_b32 v{T1}, 1, v2"); A(f"v_lshlrev_b32 v{T1}, 4, v{T1}"); A(f"v_add_u32 v{VL}, v{VL}, v{T1}")
        A(f"v_lshlrev_b32 v{T2}, 2, v0")
        A("s_mov_b32 exec_hi, 0")
        A(f"ds_write_b32 v{T2}, v{VZ} offset:{L_ST}")
        A("s_mov_b64 exec, -1")
        self.stamp(10)
        A(f"s_waitcnt vmcnt({34+NS})")
        self.stamp(11)
        U = XV + 4
        for k in range(4):
            A(f"v_lshlrev_b32 v{U+2*k}, 16, v{XV+k}")
            A(f"v_and_b32 v{U+2*k+1}, 0xffff0000, v{XV+k}")
        A(f"v_add_f32 v{MEAN}, v{U}, v{U+1}")
        for e in range(2, 8): A(f"v_add_f32 v{MEAN}, v{MEAN}, v{U+e}")
        self.bfly("v_add_f32", MEAN, T0)
        A(f"v_mul_f32 v{MEAN}, {f32(1.0/512)}, v{MEAN}")
        for e in range(8): A(f"v_sub_f32 v{U+e}, v{U+e}, v{MEAN}")
        A(f"v_mul_f32 v{RS}, v{U}, v{U}")
        for e in range(1, 8): A(f"v_fmac_f32 v{RS}, v{U+e}, v{U+e}")
        self.bfly("v_add_f32", RS, T0)
        A(f"v_mul_f32 v{RS}, {f32(1.0/512)}, v{RS}")
        self.rnd_bf16(MEAN, MEAN)
        self.rnd_bf16(RS, RS)
        A(f"v_add_f32 v{RS}, {f32(1e-5)}, v{RS}")
        self.rnd_bf16(RS, RS)
        A(f"v_sqrt_f32 v{RS}, v{RS}")
        self.nop(1)
        self.rnd_bf16(RS, RS)
        A(f"v_rcp_f32 v{RS}, v{RS}")
        def xn_pack(r):
            A(f"v_lshlrev_b32 v{r}, 16, v{r}")
            A(f"v_sub_f32 v{r}, v{r}, v{MEAN}")
            self.rnd_bf16(r, r)
            A(f"v_mul_f32 v{r}, v{r}, v{RS}")
            A(f"v_cvt_pk_bf16_f32 v{r}, v{r}, v{r}")
        self.stamp(12)
        A(f"s_waitcnt vmcnt({32+NS})")
        xn_pack(XD); xn_pack(XD + 1)
        self.nop(2)
        self.stamp(7)
        self.diag_mfmas(32, lambda j: XD + j // 16, WB, ACC, 31 + NS)
        A(f"s_lshl_b32 s7, s9, 9")
        A(f"v_add_u32 v{T0}, s7, v{VL}")
        A("s_mov_b32 exec_hi, 0")
        self.nop(6)
        A(f"ds_write_b128 v{T0}, v[{ACC}:{ACC+3}] offset:{L_QP}")
        A("s_mov_b32 exec_hi, -1")
        self.stamp(8)
        A("s_waitcnt vmcnt(0) lgkmcnt(0)")
        A("s_barrier")
        self.stamp(1)
        lskip = self.newlab("L_noflag")
        A("s_cmp_ge_u32 s2, 32"); A(f"s_cbranch_scc1 {lskip}")
        A("s_cmp_lg_u32 s9, 0"); A(f"s_cbranch_scc1 {lskip}")
        A(f"v_mov_b32 v{T1}, 1"); A("s_lshl_b32 s7, s2, 2")
        A("s_mov_b64 exec, 1")
        A(f"buffer_store_dword v{T1}, v{VZ}, s[60:63], s7 offen sc1")
        A("s_mov_b64 exec, -1")
        self.lab(lskip)
        lnf = self.newlab("L_noffn")
        A(f"s_sub_u32 s10, s2, {FFN_WG0}"); A(f"s_cmp_ge_u32 s10, {NFFN}"); A(f"s_cbranch_scc1 {lnf}")
        if "noffn" not in self.dbg: self.ffn(WB, XD, VZ, VO, VL, VD, ACC, ACC2, G)
        self.lab(lnf)
        self.srd(48, 24, 4096 * 1024 if "nowo" not in self.dbg else 0)
        A("s_lshl_b32 s7, s4, 17"); A("s_lshl_b32 s8, s9, 8"); A("s_add_u32 s7, s7, s8")
        A(f"v_lshlrev_b32 v{VO}, 10, v2"); A(f"v_lshlrev_b32 v{T2}, 4, v1"); A(f"v_add3_u32 v{VO}, v{VO}, v{T2}, s7")
        if self.wodelay:
            l0 = self.newlab("L_wd"); l1 = self.newlab("L_wdd")
            A("s_mov_b32 s10, 0")
            self.lab(l0)
            A(f"ds_read_b32 v{T0}, v{VZ} offset:{L_PG}")
            A("s_waitcnt lgkmcnt(0)")
            A(f"v_readfirstlane_b32 s8, v{T0}")
            A("s_add_u32 s10, s10, 1")
            A(f"s_cmp_ge_u32 s10, {SPIN_MAX*4}"); A(f"s_cbranch_scc1 {l1}")
            A(f"s_cmp_ge_u32 s8, {self.wodelay}"); A(f"s_cbranch_scc1 {l1}")
            A("s_sleep 12")
            A(f"s_branch {l0}")
            self.lab(l1)
        savepol = self.wpol
        if self.wopol is not None: self.wpol = self.wopol
        self.wloads(WB, VO, 48, 4096, pace=self.wopace)
        self.wpol = savepol
        A(f"v_mov_b32 v{T0}, 0x0100"); A(f"v_mov_b32 v{T1}, 0x0302")
        A("v_cmp_gt_u32 vcc, 8, v1"); self.nop(2)
        A(f"v_cndmask_b32 v{T0}, v{T1}, v{T0}, vcc")
        A(f"v_lshlrev_b32 v{T1}, 16, v{T0}"); A(f"v_or_b32 v{T0}, v{T0}, v{T1}")
        A(f"v_and_b32 v{T1}, 7, v1"); A(f"v_lshrrev_b32 v{T2}, 1, v{T1}")
        A(f"v_and_b32 v{T1}, 1, v1"); A(f"v_lshlrev_b32 v{T1}, 4, v{T1}")
        A(f"v_mov_b32 v{ACC2}, 0xffff"); A(f"v_lshlrev_b32 v{T1}, v{T1}, v{ACC2}")
        A(f"v_mov_b32 v{ACC2}, 0x0c0c0c0c")
        A(f"v_bfi_b32 v{T0}, v{T1}, v{T0}, v{ACC2}")
        for k in range(4):
            A(f"v_cmp_eq_u32 vcc, {k}, v{T2}"); self.nop(2)
            A(f"v_cndmask_b32 v{SEL+k}, v{ACC2}, v{T0}, vcc")
        VG = 47
        A(f"v_lshrrev_b32 v{VG}, 2, v0"); A(f"v_lshlrev_b32 v{VG}, 11, v{VG}")
        A(f"v_and_b32 v{T0}, 3, v0"); A(f"v_lshlrev_b32 v{T0}, 4, v{T0}"); A(f"v_add_u32 v{VG}, v{VG}, v{T0}")
        lns = self.newlab("L_nosync")
        A("s_cmp_lg_u32 s9, 0"); A(f"s_cbranch_scc1 {lns}")
        self.sync_wave(VZ, G)
        self.lab(lns)
        BF, XF = 34, 35
        lnb = self.newlab("L_nob")
        A("s_cmp_lg_u32 s9, 1"); A(f"s_cbranch_scc1 {lnb}")
        A("s_cmp_ge_u32 s2, 32"); A(f"s_cbranch_scc1 {lnb}")
        if "noffn" not in self.dbg: self.bpart(BF, XF, ACC2, VZ, VG, G)
        self.lab(lnb)
        A("s_lshl_b32 s7, s2, 11"); A("s_lshl_b32 s8, s9, 9"); A("s_add_u32 s7, s7, s8"); A(f"s_add_u32 s7, s7, {W_PART}")
        A("s_lshl_b32 s12, s9, 17"); A("s_lshl_b32 s8, s2, 6"); A("s_add_u32 s12, s12, s8"); A(f"s_add_u32 s12, s12, {W_PART}")
        for k in range(1, 4): A(f"s_add_u32 s{12+k}, s12, {32768*k}")
        A("s_waitcnt vmcnt(0) lgkmcnt(0)")
        self.stamp(2)
        A("s_barrier")
        self.stamp(3)
        if "notail" in self.dbg: A("s_endpgm")
        OP = 36
        FW = ACC2
        A(f"ds_read_b128 v[{FW}:{FW+3}], v{VZ} offset:{L_FW}")
        for w in range(4):
            A(f"ds_read_b32 v{OP+2*w}, v{VD} offset:{L_OP+512*w}")
            A(f"ds_read_b32 v{OP+2*w+1}, v{VD1} offset:{L_OP+512*w}")
        A("s_waitcnt lgkmcnt(0)")
        for i in range(2):
            A(f"v_mul_f32 v{XD+i}, v{FW}, v{OP+i}")
            for w in range(1, 4): A(f"v_fmac_f32 v{XD+i}, v{FW+w}, v{OP+2*w+i}")
        if "nohilo" in self.dbg:
            for i in range(2): A(f"v_cvt_pk_bf16_f32 v{XD+i}, v{XD+i}, v{XD+i}")
            self.nop(2)
            self.diag_mfmas(32, lambda j: XD + j // 16, WB, ACC, None)
            self.nop(8)
        else:
            for i in range(2):
                self.rnd_bf16(T1 + i, XD + i)
                A(f"v_sub_f32 v{T1+i}, v{XD+i}, v{T1+i}")
                A(f"v_cvt_pk_bf16_f32 v{XD+i}, v{XD+i}, v{T1+i}")
            self.nop(2)
            self.diag_mfmas(32, lambda j: XD + j // 16, WB, ACC, None, hilo=True, sel=SEL, tb=T0)
            self.nop(8)
            for r in range(4): A(f"v_mov_b32 v{ACC2+r}, v{ACC+r}")
            self.nop(1)
            for r in range(4): A(f"v_permlane32_swap_b32 v{ACC+r}, v{ACC2+r}")
            for r in range(4): A(f"v_add_f32 v{ACC+r}, v{ACC+r}, v{ACC2+r}")
        for r in range(4): A(f"v_min_u32 v{ACC+r}, -2, v{ACC+r}")
        A("s_mov_b32 exec_hi, 0")
        A(f"buffer_store_dwordx4 v[{ACC}:{ACC+3}], v{VL}, s[64:67], s7 offen sc1")
        A("s_mov_b32 exec_hi, -1")
        self.stamp(4)
        lfin = self.newlab("L_hend")
        A("s_cmp_ge_u32 s2, 32"); A(f"s_cbranch_scc1 {lfin}")
        lp = self.newlab("L_gat"); lpd = self.newlab("L_gatd")
        def gl(base):
            for k in range(4):
                A(f"buffer_load_dwordx4 v[{base+4*k}:{base+4*k+3}], v{VG}, s[64:67], s{12+k} offen sc1")
        def gchk(base):
            A(f"v_max3_u32 v{T1}, v{base}, v{base+1}, v{base+2}")
            for k in range(3, 15, 2): A(f"v_max3_u32 v{T1}, v{T1}, v{base+k}, v{base+k+1}")
            A(f"v_max_u32 v{T1}, v{T1}, v{base+15}")
            A(f"v_cmp_eq_u32 vcc, -1, v{T1}")
        A("s_mov_b32 s10, 0")
        if "pp" in self.dbg:
            G2 = G + 16; lb = self.newlab("L_gatb")
            gl(G)
            A(f"s_sleep {self.ppd}")
            gl(G2)
            self.lab(lp)
            A("s_waitcnt vmcnt(4)")
            gchk(G)
            A("s_add_u32 s10, s10, 1")
            A(f"s_cmp_ge_u32 s10, {SPIN_MAX}"); A(f"s_cbranch_scc1 {lpd}")
            A(f"s_cbranch_vccz {lpd}")
            gl(G)
            A("s_waitcnt vmcnt(4)")
            gchk(G2)
            self.nop(4)
            A(f"s_cbranch_vccz {lb}")
            gl(G2)
            A(f"s_branch {lp}")
            self.lab(lb)
            G3 = G + 32
            for r in range(4):
                A(f"v_add_f32 v{G3+r}, v{G2+r}, v{G2+4+r}")
                A(f"v_add_f32 v{G3+8+r}, v{G2+8+r}, v{G2+12+r}")
            lj = self.newlab("L_gatj")
            A(f"s_branch {lj}")
            self.lab(lpd)
            for r in range(4):
                A(f"v_add_f32 v{G3+r}, v{G+r}, v{G+4+r}")
                A(f"v_add_f32 v{G3+8+r}, v{G+8+r}, v{G+12+r}")
            self.lab(lj)
            G = G3
        else:
            self.lab(lp)
            gl(G)
            A("s_waitcnt vmcnt(0)")
            gchk(G)
            A("s_add_u32 s10, s10, 1")
            A(f"s_cmp_ge_u32 s10, {SPIN_MAX}"); A(f"s_cbranch_scc1 {lpd}")
            A(f"s_cbranch_vccnz {lp}")
            self.lab(lpd)
            for r in range(4):
                A(f"v_add_f32 v{G+r}, v{G+r}, v{G+4+r}")
                A(f"v_add_f32 v{G+8+r}, v{G+8+r}, v{G+12+r}")
        self.stamp(5)
        for r in range(4): A(f"v_add_f32 v{G+r}, v{G+r}, v{G+8+r}")
        self.quad_col_reduce(G, G + 4)
        A(f"s_lshl_b32 s7, s9, 6"); A(f"v_lshlrev_b32 v{T0}, 4, v0"); A(f"v_add_u32 v{T0}, s7, v{T0}")
        A("s_mov_b64 exec, 0xf")
        A(f"ds_write_b128 v{T0}, v[{G}:{G+3}] offset:{L_FIN}")
        A("s_mov_b64 exec, -1")
        A("s_waitcnt lgkmcnt(0)")
        A("s_barrier")
        A("s_cmp_lg_u32 s9, 1"); A(f"s_cbranch_scc1 {lfin}")
        A(f"v_lshlrev_b32 v{T0}, 2, v1")
        for h in range(4): A(f"ds_read_b32 v{G+h}, v{T0} offset:{L_FIN+64*h}")
        self.srd(44, 36, 1024)
        A("s_lshl_b32 s7, s2, 5")
        A(f"v_lshlrev_b32 v{T0}, 1, v1")
        A("s_waitcnt lgkmcnt(0)")
        A(f"v_add_f32 v{G}, v{G}, v{G+1}"); A(f"v_add_f32 v{G+2}, v{G+2}, v{G+3}"); A(f"v_add_f32 v{G}, v{G}, v{G+2}")
        self.rnd_bf16(G, G)
        A(f"v_add_f32 v{G}, v{XF}, v{G}")
        self.rnd_bf16(G, G)
        A(f"v_add_f32 v{G}, v{G}, v{BF}")
        A(f"v_cvt_pk_bf16_f32 v{G}, v{G}, v{G}")
        A("s_mov_b64 exec, 0xffff")
        A(f"buffer_store_short v{G}, v{T0}, s[44:47], s7 offen")
        self.stamp(6)
        self.lab(lfin)
        self.stamp_out(13)

    def quad_col_reduce(self, R, T):
        A = self.A
        for ctl in ("row_ror:4", "row_ror:8"):
            self.nop(2)
            for r in range(4):
                A(f"v_add_f32_dpp v{R+r}, v{R+r}, v{R+r} {ctl} row_mask:0xf bank_mask:0xf")
        for s in ("v_permlane16_swap_b32", "v_permlane32_swap_b32"):
            for r in range(4): A(f"v_mov_b32 v{T+r}, v{R+r}")
            self.nop(1)
            for r in range(4): A(f"{s} v{R+r}, v{T+r}")
            for r in range(4): A(f"v_add_f32 v{R+r}, v{R+r}, v{T+r}")

    def sync_wave(self, VZ, G):
        A = self.A
        T0, T1, T2 = 16, 17, 18
        VA, VW, PL, RD = G, G + 1, G + 2, G + 4
        if self.wgmap == "B":
            A(f"v_lshrrev_b32 v{T0}, 2, v0"); A(f"v_lshlrev_b32 v{T0}, 5, v{T0}"); A("s_and_b32 s7, s2, 31"); A(f"v_add_u32 v{T0}, s7, v{T0}")
        else:
            A(f"v_lshrrev_b32 v{T0}, 2, v0"); A("s_and_b32 s7, s2, 0xf8"); A(f"v_add_u32 v{T0}, s7, v{T0}")
        A(f"v_and_b32 v{T0}, 255, v{T0}")
        A(f"v_lshlrev_b32 v{T0}, 7, v{T0}"); A(f"v_and_b32 v{T1}, 3, v0"); A(f"v_lshlrev_b32 v{T1}, 3, v{T1}"); A(f"v_add_u32 v{T0}, v{T0}, v{T1}")
        A(f"v_mul_u32_u24 v{T1}, 15, v1"); A(f"v_add_u32 v{T1}, 1, v{T1}"); A(f"v_add_u32 v{T1}, s2, v{T1}")
        A(f"v_and_b32 v{T1}, 255, v{T1}"); A(f"v_lshlrev_b32 v{T1}, 7, v{T1}"); A(f"v_add_u32 v{T1}, 64, v{T1}")
        A("v_cmp_gt_u32 vcc, 32, v0"); self.nop(2)
        A(f"v_cndmask_b32 v{VA}, v{T1}, v{T0}, vcc")
        A("s_lshl_b32 s7, s2, 7"); A(f"v_lshlrev_b32 v{VW}, 3, v1"); A(f"v_add_u32 v{VW}, s7, v{VW}")
        A(f"v_mov_b32 v{PL}, -1"); A(f"v_mov_b32 v{PL+1}, -1")
        A(f"s_mov_b32 s11, {W_PG}")
        A(f"v_and_b32 v{T2}, 3, v0"); A(f"v_lshlrev_b32 v{T2}, 4, v{T2}")
        if self.duty is not None and self.dinit:
            A(f"v_mov_b32 v{T0}, {self.dinit}"); A(f"ds_write_b32 v{VZ}, v{T0} offset:{L_CT}")
        ms = self.miles + [64]
        assert 32 in self.miles
        kst = max(k for k in range(len(self.miles)) if self.miles[k] <= 64 - self.TRIG)
        for k in range(len(self.miles)):
            m, nx = ms[k], ms[k + 1]
            l0 = self.newlab("L_ms"); l1 = self.newlab("L_msd"); l2 = self.newlab("L_msn")
            A("s_mov_b32 s10, 0")
            self.lab(l0)
            if m == 32:
                A(f"ds_read_b128 v[{RD}:{RD+3}], v{T2} offset:{L_ST}")
                A("s_waitcnt lgkmcnt(0)")
                A(f"v_cmp_ne_u32 vcc, 1, v{RD+2}")
                A("s_add_u32 s10, s10, 1")
                A(f"s_cmp_ge_u32 s10, {SPIN_MAX*4}"); A(f"s_cbranch_scc1 {l1}")
                A(f"s_cbranch_vccz {l1}")
            else:
                A(f"ds_read_b32 v{T0}, v{VZ} offset:{L_PG}")
                A("s_waitcnt lgkmcnt(0)")
                A(f"v_readfirstlane_b32 s8, v{T0}")
                A("s_add_u32 s10, s10, 1")
                A(f"s_cmp_ge_u32 s10, {SPIN_MAX*4}"); A(f"s_cbranch_scc1 {l1}")
                A(f"s_cmp_ge_u32 s8, {m}"); A(f"s_cbranch_scc1 {l1}")
            A("s_sleep 12")
            A(f"s_branch {l0}")
            self.lab(l1)
            if k == 0:
                self.check_flags(T1, T0, 10)
            if m == 32:
                A("s_mov_b64 exec, 0xf")
                A(f"v_min_u32 v{PL}, -2, v{RD}"); A(f"v_min_u32 v{PL+1}, -2, v{RD+1}")
            elif k != kst and nx < 64:
                A(f"s_cmp_ge_u32 s8, {nx}"); A(f"s_cbranch_scc1 {l2}")
            A("s_mov_b64 exec, 0xfff0")
            A(f"v_mov_b32 v{PL}, {m}"); A(f"v_mov_b32 v{PL+1}, {m}")
            A("s_mov_b64 exec, 0xffff")
            A(f"buffer_store_dwordx2 v[{PL}:{PL+1}], v{VW}, s[64:67], s11 offen sc1")
            lr = self.newlab("L_rd"); lrd = self.newlab("L_rdd")
            A("s_mov_b32 s10, 0")
            self.lab(lr)
            if k == kst:
                A("s_mov_b32 exec_lo, -1"); A("s_mov_b32 exec_hi, 0xffff")
            else:
                A("s_mov_b32 exec_lo, 0"); A("s_mov_b32 exec_hi, 0xffff")
            A(f"buffer_load_dwordx2 v[{RD}:{RD+1}], v{VA}, s[64:67], s11 offen sc1")
            A("s_waitcnt vmcnt(0)")
            A("s_mov_b32 exec_lo, 0")
            A(f"v_cmp_le_i32 vcc, {m}, v{RD}")
            A("s_mov_b64 exec, -1")
            self.nop(4)
            A("s_bcnt1_i32_b64 s8, vcc")
            if self.c0:
                A(f"s_max_u32 s8, s8, {self.c0}"); A(f"s_sub_u32 s8, s8, {self.c0}")
            mul = (nx - m) * self.gain
            if self.cap: mul = min(mul, round(256 * self.cap / (16 - self.c0)))
            if self.duty is None:
                A(f"s_mul_i32 s8, s8, {mul}")
                A("s_add_u32 s8, s8, 128"); A("s_lshr_b32 s8, s8, 8")
                A(f"s_min_u32 s8, s8, {nx - m}")
                A(f"s_add_u32 s8, s8, {m + 2}")
            else:
                A(f"s_mul_i32 s8, s8, {round(mul / (nx - m))}")
                A(f"s_add_u32 s8, s8, {self.duty}")
                A(f"s_min_u32 s8, s8, 256")
            A(f"v_mov_b32 v{T0}, s8")
            if self.ctl: A(f"ds_write_b32 v{VZ}, v{T0} offset:{L_CT}")
            if k == kst:
                A("s_mov_b32 exec_hi, 0")
                A(f"v_max_u32 v{T1}, v{RD}, v{RD+1}")
                A(f"v_cmp_eq_u32 vcc, -1, v{T1}")
                A("s_mov_b64 exec, -1")
                A("s_add_u32 s10, s10, 1")
                A(f"s_cmp_ge_u32 s10, {SPIN_MAX}"); A(f"s_cbranch_scc1 {lrd}")
                A(f"s_cbranch_vccz {lrd}")
                A("s_sleep 64")
                A(f"s_branch {lr}")
                self.lab(lrd)
                A(f"v_mov_b32 v{RD+2}, v{RD}")
                self.bfly("v_max_f32", RD + 2, T1, full=False)
                A(f"v_sub_f32 v{RD}, v{RD}, v{RD+2}")
                A(f"v_mul_f32 v{RD}, {f32(LOG2E)}, v{RD}")
                A(f"v_exp_f32 v{RD}, v{RD}")
                self.nop(1)
                A(f"v_mul_f32 v{RD+1}, v{RD+1}, v{RD}")
                self.bfly("v_add_f32", RD + 1, T1, full=False)
                A(f"v_rcp_f32 v{RD+1}, v{RD+1}")
                self.nop(1)
                A(f"v_mul_f32 v{RD}, v{RD}, v{RD+1}")
                A(f"v_and_b32 v{T0}, 3, v0"); A(f"v_lshlrev_b32 v{T0}, 2, v{T0}")
                A("s_lshl_b32 s8, s5, 2")
                A("s_lshl_b64 s[12:13], 15, s8")
                A("s_mov_b64 exec, s[12:13]")
                A(f"ds_write_b32 v{T0}, v{RD} offset:{L_FW}")
                A("s_mov_b64 exec, -1")
            self.lab(l2)
        A("s_mov_b64 exec, -1")

    def bpart(self, BF, XF, S4, VZ, VG, G):
        A = self.A
        T0, T1, T2 = 16, 17, 18
        self.srd(52, 34, 1024)
        A("s_lshl_b32 s7, s2, 5")
        A(f"v_lshlrev_b32 v{T0}, 1, v1")
        A(f"buffer_load_ushort v{XF}, v{T0}, s[44:47], s7 offen")
        A(f"buffer_load_ushort v{S4}, v{T0}, s[52:55], s7 offen")
        self.wait_trigger(VZ, T1, 10)
        self.check_flags(T1, T2, 10)
        A(f"s_lshl_b32 s7, s2, 6"); A(f"s_add_u32 s7, s7, {W_PART + 256*2048}")
        for r in range(4): A(f"v_mov_b32 v{G+r}, 0")
        A(f"s_mov_b32 exec_hi, {(1 << (NFFN*4 - 32)) - 1}")
        lp = self.newlab("L_bg"); lpd = self.newlab("L_bgd")
        A("s_mov_b32 s10, 0")
        self.lab(lp)
        A(f"buffer_load_dwordx4 v[{G}:{G+3}], v{VG}, s[64:67], s7 offen sc1")
        A("s_waitcnt vmcnt(0)")
        A(f"v_max3_u32 v{T1}, v{G}, v{G+1}, v{G+2}")
        A(f"v_max_u32 v{T1}, v{T1}, v{G+3}")
        A(f"v_cmp_eq_u32 vcc, -1, v{T1}")
        A("s_add_u32 s10, s10, 1")
        A(f"s_cmp_ge_u32 s10, {SPIN_MAX}"); A(f"s_cbranch_scc1 {lpd}")
        A(f"s_cbranch_vccz {lpd}")
        A("s_sleep 64")
        A(f"s_branch {lp}")
        self.lab(lpd)
        A("s_mov_b32 exec_hi, -1")
        self.quad_col_reduce(G, G + 4)
        A(f"v_lshlrev_b32 v{T0}, 4, v0")
        A("s_mov_b64 exec, 0xf")
        A(f"ds_write_b128 v{T0}, v[{G}:{G+3}] offset:{L_FIN+256}")
        A("s_mov_b64 exec, -1")
        A(f"v_lshlrev_b32 v{T0}, 2, v1")
        A("s_waitcnt lgkmcnt(0)")
        A(f"ds_read_b32 v{BF}, v{T0} offset:{L_FIN+256}")
        A(f"v_lshlrev_b32 v{XF}, 16, v{XF}")
        A(f"v_lshlrev_b32 v{S4}, 16, v{S4}")
        A("s_waitcnt lgkmcnt(0)")
        self.rnd_bf16(BF, BF)
        A(f"v_add_f32 v{BF}, v{BF}, v{S4}")
        self.rnd_bf16(BF, BF)

    def ffn(self, WB, XD, VZ, VO, VL, VD, ACC, ACC2, G):
        A = self.A
        T0, T1, T2 = 16, 17, 18
        pace = self.pace
        self.srd(48, 28, 512 * 3584 if "now12" not in self.dbg else 0)
        self.srd(52, 30, 3584)
        self.srd(56, 32, 1792 * 1024 if "now12" not in self.dbg else 0)
        A("s_lshl_b32 s7, s10, 8")
        VD1 = 80
        A(f"v_lshrrev_b32 v{T0}, 1, v{VD}"); A(f"v_lshrrev_b32 v{T1}, 1, v{VD1}")
        A(f"buffer_load_ushort v{G+8}, v{T0}, s[52:55], s7 offen")
        A(f"buffer_load_ushort v{G+9}, v{T1}, s[52:55], s7 offen")
        A(f"s_mul_i32 s8, s9, {128*3584}"); A("s_add_u32 s7, s7, s8")
        A(f"v_mul_u32_u24 v{VO}, 3584, v2"); A(f"v_lshlrev_b32 v{T2}, 4, v1"); A(f"v_add3_u32 v{VO}, v{VO}, v{T2}, s7")
        self.wloads(WB, VO, 48, 14336, pace=pace, rot=self.qrot)
        self.diag_mfmas(32, lambda j: XD + j // 16, WB, ACC, 31)
        A(f"s_lshl_b32 s7, s9, 9")
        A(f"v_add_u32 v{T0}, s7, v{VL}")
        A(f"v_mov_b32 v{T1}, 1")
        A("s_mov_b32 exec_hi, 0")
        self.nop(6)
        A(f"ds_write_b128 v{T0}, v[{ACC}:{ACC+3}] offset:{L_FS}")
        A("s_mov_b64 exec, 1")
        A(f"ds_add_u32 v{VZ}, v{T1} offset:{L_FC}")
        A("s_mov_b64 exec, -1")
        A("s_lshl_b32 s7, s10, 17"); A("s_lshl_b32 s8, s9, 8"); A("s_add_u32 s7, s7, s8")
        A(f"v_lshlrev_b32 v{VO}, 10, v2"); A(f"v_lshlrev_b32 v{T2}, 4, v1"); A(f"v_add3_u32 v{VO}, v{VO}, v{T2}, s7")
        self.wloads(WB, VO, 56, 4096, pace=pace)
        l0 = self.newlab("L_fc"); l1 = self.newlab("L_fcd")
        A("s_mov_b32 s11, 0")
        self.lab(l0)
        A(f"ds_read_b32 v{T1}, v{VZ} offset:{L_FC}")
        A("s_waitcnt lgkmcnt(0)")
        A(f"v_cmp_ne_u32 vcc, 4, v{T1}")
        A("s_add_u32 s11, s11, 1")
        A(f"s_cmp_ge_u32 s11, {SPIN_MAX*4}"); A(f"s_cbranch_scc1 {l1}")
        A(f"s_cbranch_vccz {l1}")
        A("s_sleep 8")
        A(f"s_branch {l0}")
        self.lab(l1)
        for w in range(4):
            A(f"ds_read_b32 v{G+2*w}, v{VD} offset:{L_FS+512*w}")
            A(f"ds_read_b32 v{G+2*w+1}, v{VD1} offset:{L_FS+512*w}")
        A("s_waitcnt lgkmcnt(0)")
        HP = G + 10
        for i in range(2):
            A(f"v_add_f32 v{G+i}, v{G+i}, v{G+2+i}"); A(f"v_add_f32 v{G+4+i}, v{G+4+i}, v{G+6+i}")
            A(f"v_add_f32 v{G+i}, v{G+i}, v{G+4+i}")
            self.rnd_bf16(G + i, G + i)
            A(f"v_lshlrev_b32 v{G+8+i}, 16, v{G+8+i}")
            A(f"v_add_f32 v{G+i}, v{G+i}, v{G+8+i}")
            self.rnd_bf16(G + i, G + i)
            A(f"v_cmp_lt_f32 vcc, 0, v{G+i}"); self.nop(2)
            A(f"v_cndmask_b32 v{G+i}, 0, v{G+i}, vcc")
            A(f"v_mul_f32 v{G+i}, v{G+i}, v{G+i}")
            A(f"v_cvt_pk_bf16_f32 v{HP+i}, v{G+i}, v{G+i}")
        self.check_flags(T1, T2, 11)
        self.diag_mfmas(32, lambda j: HP + j // 16, WB, ACC, None)
        self.nop(8)
        for r in range(4): A(f"v_min_u32 v{ACC2+r}, -2, v{ACC+r}")
        A("s_lshl_b32 s7, s10, 11"); A("s_lshl_b32 s8, s9, 9"); A("s_add_u32 s7, s7, s8"); A(f"s_add_u32 s7, s7, {W_PART + 256*2048}")
        A("s_mov_b32 exec_hi, 0")
        A(f"buffer_store_dwordx4 v[{ACC2}:{ACC2+3}], v{VL}, s[64:67], s7 offen sc1")
        A("s_mov_b32 exec_hi, -1")
        self.nop(2)

if __name__ == "__main__":
    import argparse
    ap = argparse.ArgumentParser()
    ap.add_argument("out"); ap.add_argument("--D", type=int, default=6); ap.add_argument("--mode", default="slow")
    ap.add_argument("--stamps", action="store_true"); ap.add_argument("--map", default="A"); ap.add_argument("--dbg", default="")
    a = ap.parse_args()
    open(a.out, "w").write(Gen(a.D, a.mode, a.stamps, a.map, a.dbg).build())
```
